```python
import torch

def _softmax(x, axis=-1):
    return torch.softmax(x, dim=axis)
def _gelu(x):
    return torch.nn.functional.gelu(x, approximate="tanh")
def _silu(x):
    return torch.nn.functional.silu(x)
def _sigmoid(x):
    return torch.sigmoid(x)
def _layernorm(x, axis=-1, eps=1e-5):
    m = x.mean(dim=axis, keepdim=True)
    v = x.var(dim=axis, keepdim=True, unbiased=False)
    return (x - m) / torch.sqrt(v + eps)
def _scatter_add(tgt, idx, src, axis=0):
    return tgt.clone().index_add_(axis, idx, src)
def _segment_sum(src, seg, n):
    out = torch.zeros((n,) + src.shape[1:], dtype=src.dtype)
    return out.index_add_(0, seg, src)
def _pad(x, pw):
    flat = tuple(v for pair in reversed(pw) for v in pair)
    return torch.nn.functional.pad(x, flat)

kernel_name = 'gated_mix__mha_block_cached__dense_activation_silu__decode'

def setup_inputs():

    _w = (lambda a: (lambda t: t.to(torch.bfloat16) if t.is_floating_point() else t)(torch.as_tensor(a)))
    def _A_setup():
        B, Sq, D = 2, 1, 640
        H, Sk, Dh = 32, 4096, 128
        return {
            "x": _w((lambda *s: torch.randn(*s, dtype=torch.bfloat16) * 0.05)(B, Sq, D)),
            "k_cache": _w((lambda *s: torch.randn(*s, dtype=torch.bfloat16) * 6.4)(B, H, Sk, Dh)),
            "v_cache": _w((lambda *s: torch.randn(*s, dtype=torch.bfloat16) * 0.2)(B, H, Sk, Dh)),
            "wq": _w((lambda *s: torch.randn(*s, dtype=torch.bfloat16) * 6.4)(D, H * Dh) * (D ** -0.5)),
            "wo": _w((lambda *s: torch.randn(*s, dtype=torch.bfloat16) * 0.2)(H * Dh, D) * ((H * Dh) ** -0.5)),
        }
    _A_in = _A_setup()

    def _B_setup():
        B, S, D, F = 2, 1, 640, 1728
        return {
            "x": _w((lambda *s: torch.randn(*s, dtype=torch.bfloat16) * 0.05)(B, S, D)),
            "w1": _w((lambda *s: torch.randn(*s, dtype=torch.bfloat16) * 6.4)(D, F) * (D ** -0.5)),
            "w2": _w((lambda *s: torch.randn(*s, dtype=torch.bfloat16) * 0.05)(F, D) * (F ** -0.5)),
        }
    _B_in = _B_setup()

    return {
        "A_x": _A_in["x"],
        "A_k_cache": _A_in["k_cache"],
        "A_v_cache": _A_in["v_cache"],
        "A_wq": _A_in["wq"],
        "A_wo": _A_in["wo"],
        "B_x": _B_in["x"],
        "B_w1": _B_in["w1"],
        "B_w2": _B_in["w2"],
        "gate_w": _w((lambda *s: torch.randn(*s, dtype=torch.bfloat16) * 0.05)(640) * 16.0),
    }

def reference(A_x, A_k_cache, A_v_cache, A_wq, A_wo, B_x, B_w1, B_w2, gate_w):
    def _A_ref(x, k_cache, v_cache, wq, wo):
        B, Sq, D = x.shape
        H, Dh = 32, 128
        q = (lambda x, *d: x.permute(*d))((x @ wq).reshape(B, Sq, H, Dh), 0, 2, 1, 3)
        scores = torch.einsum("bhqd,bhkd->bhqk", q, k_cache) * (Dh ** -0.5)
        p = _softmax(scores, axis=-1)
        o = torch.einsum("bhqk,bhkd->bhqd", p, v_cache)
        return (lambda x, *d: x.permute(*d))(o, 0, 2, 1, 3).reshape(B, Sq, H * Dh) @ wo

    def _B_ref(x, w1, w2):
        h = torch.einsum("bsd,df->bsf", x, w1)
        h = _silu(h)
        out = torch.einsum("bsf,fd->bsd", h, w2)
        return out

    x = A_x
    g = _sigmoid((x * gate_w).sum(-1, keepdims=True))
    a = _A_ref(x, A_k_cache, A_v_cache, A_wq, A_wo)
    b = _B_ref(x, B_w1, B_w2)
    return g * a + (1 - g) * b
```

```python
import sys
NAME = "gated_mix__mha_block_cached__dense_activation_silu__decode"
NT = " nt" if (len(sys.argv) > 2 and 'nt' in sys.argv[2]) else ""
out = []
def e(s): out.append("    " + s)
def lab(s): out.append(s + ":")
def nop(n): e(f"s_nop {n-1}")

XS, QP, QB, HP, HS, MS, LP, OS, OP, YP = 0, 8192, 16384, 16640, 18688, 18816, 19072, 19200, 20480, 28672
LDS1 = 28672 + 13 * 2560
Y_OFF, ML_OFF, Y2_OFF = 0, 1 << 20, 2 << 20
LOG2E = 0x3fb8aa3b
SCALE = 0x3db504f3

class VM:
    def __init__(s): s.l = []
    def issue(s, tag): s.l.append(tag)
    def wait(s, tag):
        n = len(s.l) - 1 - s.l.index(tag)
        e(f"s_waitcnt vmcnt({n})")

def allreduce_g(regs, tmp, op="v_add_f32"):
    for r, t in zip(regs, tmp): e(f"v_mov_b32 v{t}, v{r}")
    nop(2)
    for r, t in zip(regs, tmp): e(f"v_permlane16_swap_b32 v{r}, v{t}")
    for r, t in zip(regs, tmp): e(f"{op} v{r}, v{r}, v{t}")
    for r, t in zip(regs, tmp): e(f"v_mov_b32 v{t}, v{r}")
    nop(2)
    for r, t in zip(regs, tmp): e(f"v_permlane32_swap_b32 v{r}, v{t}")
    for r, t in zip(regs, tmp): e(f"{op} v{r}, v{r}, v{t}")

def srd(d, lo, hi, nrec):
    e(f"s_mov_b32 s{d}, s{lo}")
    e(f"s_and_b32 s{d+1}, s{hi}, 0xffff")
    e(f"s_mov_b32 s{d+2}, {nrec}")
    e(f"s_mov_b32 s{d+3}, 0x00020000")

SX, SK, SV, SWQ, SWO, SW1, SW2, SWS = 36, 40, 44, 48, 52, 56, 60, 64

def k1_body(ffn):
    vm = VM()
    R1 = 24; R2 = 64
    WQ = [R1 + 4*i for i in range(10)]
    KR = [R2 + 4*i for i in range(16)]
    VR = [24, 28, 32, 36] + [64 + 4*i for i in range(12)]
    WO = [112, 116, 120, 124] + [24, 28, 32, 36] + [64, 68, 72]
    S = [40 + i for i in range(16)]
    ACC = [56 + i for i in range(8)]
    W1 = [104 + i for i in range(5)]
    W2 = [112 + i for i in range(16)]
    Q = [4, 5, 6, 7]
    e("v_lshlrev_b32 v2, 1, v0")
    e(f"buffer_load_ushort v16, v2, s[{SX}:{SX+3}], 0 offen"); vm.issue('x0')
    e(f"buffer_load_ushort v17, v2, s[{SX}:{SX+3}], 0 offen offset:1280"); vm.issue('x1')
    e("v_bfe_u32 v8, v0, 4, 2")
    e("v_and_b32 v9, 15, v0")
    e("v_mul_u32_u24 v3, 10, v8")
    e("v_add_u32 v3, s70, v3")
    e("v_lshlrev_b32 v3, 13, v3")
    e("v_lshl_add_u32 v3, v9, 4, v3")
    for i in range(10):
        e(f"buffer_load_dwordx4 v[{WQ[i]}:{WQ[i]+3}], v3, s[{SWQ}:{SWQ+3}], s{80+i} offen"); vm.issue(f'wq{i}')
    if ffn:
        e("v_lshrrev_b32 v10, 3, v0")
        e("v_mul_u32_u24 v10, 5, v10")
        e("v_mov_b32 v11, 3456")
        e("v_mul_u32_u24 v10, v10, v11")
        e("v_and_b32 v11, 7, v0")
        e("v_lshl_add_u32 v10, v11, 2, v10")
        e("v_add_u32 v10, s71, v10")
        for i in range(5):
            e(f"buffer_load_dword v{W1[i]}, v10, s[{SW1}:{SW1+3}], 0 offen"); vm.issue(f'w1{i}')
            if i < 4: e("v_add_u32 v10, 3456, v10")
        e("v_lshlrev_b32 v10, 2, v0")
        e("v_add_u32 v10, s72, v10")
        for r in range(16):
            e(f"buffer_load_dword v{W2[r]}, v10, s[{SW2}:{SW2+3}], 0 offen"); vm.issue(f'w2{r}')
            if r < 15: e("v_add_u32 v10, 1280, v10")
    e("s_barrier")
    e("v_lshlrev_b32 v1, 8, v8")
    e("v_add_u32 v1, s73, v1")
    e("v_lshl_add_u32 v1, v9, 4, v1")
    def kv_load(reg, srdb, i, tag):
        so = ["0", "s74", "s75", "s76"][i // 4]
        e(f"buffer_load_dwordx4 v[{reg}:{reg+3}], v1, s[{srdb}:{srdb+3}], {so} offen offset:{(i%4)*1024}{NT}"); vm.issue(tag)
    for i in range(10): kv_load(KR[i], SK, i, f'k{i}')
    vm.wait('x1')
    e("v_lshlrev_b32 v16, 16, v16")
    e("v_lshlrev_b32 v17, 16, v17")
    e("v_lshlrev_b32 v2, 2, v0")
    e(f"ds_write_b32 v2, v16 offset:{XS}")
    e(f"ds_write_b32 v2, v17 offset:{XS+4096}")
    e("s_waitcnt lgkmcnt(0)")
    e("s_barrier")
    e("v_mul_u32_u24 v2, 10, v8")
    e("v_add_u32 v2, s70, v2")
    e("v_lshlrev_b32 v2, 2, v2")
    e("v_add_u32 v2, s77, v2")
    QA = [8+i for i in range(8)]
    e("v_mov_b32 v22, v8")
    e("v_mov_b32 v23, v9")
    for a in QA: e(f"v_mov_b32 v{a}, 0")
    for half in range(2):
        for k in range(3):
            pass
        e(f"ds_read_b64 v[16:17], v2 offset:{XS+half*20}")
        e(f"ds_read_b64 v[18:19], v2 offset:{XS+half*20+8}")
        e(f"ds_read_b32 v20, v2 offset:{XS+half*20+16}")
        e("s_waitcnt lgkmcnt(0)")
        for ii in range(5):
            i = half*5 + ii
            vm.wait(f'wq{i}')
            for j in range(4):
                w = WQ[i] + j
                e(f"v_lshlrev_b32 v21, 16, v{w}")
                e(f"v_and_b32 v3, 0xffff0000, v{w}")
                e(f"v_fmac_f32 v{QA[2*j]}, v{16+ii}, v21")
                e(f"v_fmac_f32 v{QA[2*j+1]}, v{16+ii}, v3")
    allreduce_g(QA, [16+i for i in range(6)] + [2, 3])
    e("v_lshlrev_b32 v2, 5, v23")
    e("v_add_u32 v2, s78, v2")
    e(f"ds_write_b128 v2, v[8:11] offset:{QP}")
    e(f"ds_write_b128 v2, v[12:15] offset:{QP+16}")
    if ffn:
        e("v_lshrrev_b32 v2, 3, v0")
        e("v_mul_u32_u24 v2, 20, v2")
        for i in range(5):
            e(f"ds_read_b32 v{8+i}, v2 offset:{XS+4*i}")
            e(f"ds_read_b32 v{13+i}, v2 offset:{XS+4096+4*i}")
        for a in (18, 19, 20, 21): e(f"v_mov_b32 v{a}, 0")
        e("s_waitcnt lgkmcnt(0)")
        vm.wait('w14')
        for i in range(5):
            e(f"v_lshlrev_b32 v2, 16, v{W1[i]}")
            e(f"v_and_b32 v3, 0xffff0000, v{W1[i]}")
            e(f"v_fmac_f32 v18, v{8+i}, v2")
            e(f"v_fmac_f32 v19, v{8+i}, v3")
            e(f"v_fmac_f32 v20, v{13+i}, v2")
            e(f"v_fmac_f32 v21, v{13+i}, v3")
        nop(2)
        for a in (18, 19, 20, 21):
            e(f"v_add_f32_dpp v{a}, v{a}, v{a} row_ror:8 row_mask:0xf bank_mask:0xf")
        allreduce_g([18, 19, 20, 21], [8, 9, 10, 11])
        e("v_and_b32 v2, 7, v0")
        e("v_lshlrev_b32 v2, 3, v2")
        e("v_add_u32 v2, s79, v2")
        e(f"ds_write_b64 v2, v[18:19] offset:{HP}")
        e(f"ds_write_b64 v2, v[20:21] offset:{HP+64}")
    e("s_waitcnt lgkmcnt(0)")
    e("s_barrier")
    L = f"Lq{int(ffn)}"
    e("s_cmp_ge_u32 s69, 2")
    e(f"s_cbranch_scc1 {L}_a")
    e("v_lshlrev_b32 v2, 2, v0")
    for w in range(16):
        e(f"ds_read_b32 v{8+w}, v2 offset:{QP+512*w}") if w < 14 else None
    e("s_waitcnt lgkmcnt(0)")
    for w in range(1, 14): e(f"v_add_f32 v8, v8, v{8+w}")
    e(f"ds_read_b32 v9, v2 offset:{QP+512*14}")
    e(f"ds_read_b32 v10, v2 offset:{QP+512*15}")
    e("s_waitcnt lgkmcnt(0)")
    e("v_add_f32 v8, v8, v9")
    e("v_add_f32 v8, v8, v10")
    e("v_cvt_pk_bf16_f32 v8, v8, v8")
    e("v_lshlrev_b32 v2, 1, v0")
    e(f"ds_write_b16 v2, v8 offset:{QB}")
    e(f"s_branch {L}_b")
    lab(f"{L}_a")
    if ffn:
        e("s_cmp_lg_u32 s69, 2")
        e(f"s_cbranch_scc1 {L}_b")
        e("v_and_b32 v2, 31, v0")
        e("v_lshlrev_b32 v2, 2, v2")
        for w in range(14): e(f"ds_read_b32 v{8+w}, v2 offset:{HP+128*w}")
        e("s_waitcnt lgkmcnt(0)")
        for w in range(1, 14): e(f"v_add_f32 v8, v8, v{8+w}")
        e(f"ds_read_b32 v9, v2 offset:{HP+128*14}")
        e(f"ds_read_b32 v10, v2 offset:{HP+128*15}")
        e("s_waitcnt lgkmcnt(0)")
        e("v_add_f32 v8, v8, v9")
        e("v_add_f32 v8, v8, v10")
        e("v_cvt_pk_bf16_f32 v8, v8, v8")
        e("v_lshlrev_b32 v8, 16, v8")
        e(f"v_mul_f32 v9, 0xbfb8aa3b, v8")
        e("v_exp_f32 v9, v9")
        nop(1)
        e("v_add_f32 v9, 1.0, v9")
        e("v_rcp_f32 v9, v9")
        nop(1)
        e("v_mul_f32 v8, v8, v9")
        e("v_cvt_pk_bf16_f32 v8, v8, v8")
        e("v_lshlrev_b32 v8, 16, v8")
        e(f"ds_write_b32 v2, v8 offset:{HS}")
    lab(f"{L}_b")
    e("s_waitcnt lgkmcnt(0)")
    e("s_barrier")
    e("v_lshlrev_b32 v2, 4, v23")
    e(f"ds_read_b128 v[4:7], v2 offset:{QB}")
    if ffn:
        e("v_mov_b32 v2, 0")
        for r in range(4):
            e(f"ds_read_b128 v[{8+4*r}:{11+4*r}], v2 offset:{HS+16*r}")
        e("s_waitcnt lgkmcnt(0)")
        vm.wait('w215')
        for a in (104, 105, 106, 107): e(f"v_mov_b32 v{a}, 0")
        for r in range(16):
            e(f"v_lshlrev_b32 v2, 16, v{W2[r]}")
            e(f"v_and_b32 v3, 0xffff0000, v{W2[r]}")
            e(f"v_fmac_f32 v104, v{8+r}, v2")
            e(f"v_fmac_f32 v105, v{8+r}, v3")
        e("v_mov_b32 v2, 0")
        for r in range(4):
            e(f"ds_read_b128 v[{8+4*r}:{11+4*r}], v2 offset:{HS+64+16*r}")
        e("s_waitcnt lgkmcnt(0)")
        for r in range(16):
            e(f"v_lshlrev_b32 v2, 16, v{W2[r]}")
            e(f"v_and_b32 v3, 0xffff0000, v{W2[r]}")
            e(f"v_fmac_f32 v106, v{8+r}, v2")
            e(f"v_fmac_f32 v107, v{8+r}, v3")
        e("s_cmp_ge_u32 s69, 5")
        e(f"s_cbranch_scc1 Ly2skip")
        e("v_lshlrev_b32 v2, 3, v0")
        e("v_add_u32 v2, s90, v2")
        e(f"buffer_store_dwordx2 v[104:105], v2, s[{SWS}:{SWS+3}], 0 offen")
        e(f"buffer_store_dwordx2 v[106:107], v2, s[{SWS}:{SWS+3}], 0 offen offset:2560")
        lab("Ly2skip")
        nop(2)
    e("s_waitcnt lgkmcnt(0)")
    for i in range(10, 16): kv_load(KR[i], SK, i, f'k{i}')
    for i in range(4): kv_load(VR[i], SV, i, f'v{i}')
    for grp in range(4):
        ids = list(range(4*grp, 4*grp+4))
        vm.wait(f'k{ids[-1]}')
        for j in range(4):
            for i in ids:
                src2 = "0" if j == 0 else f"v{S[i]}"
                e(f"v_dot2_f32_bf16 v{S[i]}, v{KR[i]+j}, v{Q[j]}, {src2}")
        nop(3)
        for rr in (8, 4, 2, 1):
            for i in ids:
                e(f"v_add_f32_dpp v{S[i]}, v{S[i]}, v{S[i]} row_ror:{rr} row_mask:0xf bank_mask:0xf")
            if rr != 1: nop(1)
    for i in range(4, 16): kv_load(VR[i], SV, i, f'v{i}')
    e("v_mov_b32 v3, 52429")
    e("v_mul_u32_u24 v2, v0, v3")
    e("v_lshrrev_b32 v22, 22, v2")
    e("v_mul_u32_u24 v3, 80, v22")
    e("v_sub_u32 v23, v0, v3")
    e("v_mov_b32 v3, 1280")
    e("v_mul_u32_u24 v21, v22, v3")
    e("v_lshl_add_u32 v21, v23, 4, v21")
    def wo_load(i):
        e(f"v_add_u32 v2, {i*15360}, v21")
        e(f"buffer_load_dwordx4 v[{WO[i]}:{WO[i]+3}], v2, s[{SWO}:{SWO+3}], 0 offen"); vm.issue(f'wo{i}')
    for i in range(4): wo_load(i)
    for rep in range(2):
        for i in range(0, 16, 2):
            e(f"v_cvt_pk_bf16_f32 v2, v{S[i]}, v{S[i+1]}")
            e(f"v_lshlrev_b32 v{S[i]}, 16, v2")
            e(f"v_and_b32 v{S[i+1]}, 0xffff0000, v2")
        if rep == 0:
            for i in range(16): e(f"v_mul_f32 v{S[i]}, {SCALE:#x}, v{S[i]}")
    e(f"v_max3_f32 v16, v{S[0]}, v{S[1]}, v{S[2]}")
    for i in range(3, 15, 2): e(f"v_max3_f32 v16, v16, v{S[i]}, v{S[i+1]}")
    e(f"v_max_f32 v16, v16, v{S[15]}")
    e(f"v_mul_f32 v17, 0xbfb8aa3b, v16")
    e(f"s_mov_b32 s91, {LOG2E:#x}")
    for i in range(16): e(f"v_fma_f32 v{S[i]}, v{S[i]}, s91, v17")
    for i in range(16): e(f"v_exp_f32 v{S[i]}, v{S[i]}")
    nop(1)
    e(f"v_add_f32 v18, v{S[0]}, v{S[1]}")
    for i in range(2, 16): e(f"v_add_f32 v18, v18, v{S[i]}")
    for a in ACC: e(f"v_mov_b32 v{a}, 0")
    for i in range(16):
        vm.wait(f'v{i}')
        for j in range(4):
            w = VR[i] + j
            e(f"v_lshlrev_b32 v19, 16, v{w}")
            e(f"v_and_b32 v20, 0xffff0000, v{w}")
            e(f"v_fmac_f32 v{ACC[2*j]}, v{S[i]}, v19")
            e(f"v_fmac_f32 v{ACC[2*j+1]}, v{S[i]}, v20")
        if i < 7: wo_load(4 + i)
    e("v_bfe_u32 v2, v0, 4, 6")
    e("v_lshlrev_b32 v2, 2, v2")
    e(f"ds_write_b32 v2, v16 offset:{MS}")
    e("s_waitcnt lgkmcnt(0)")
    e("s_barrier")
    e("v_and_b32 v2, 63, v0")
    e("v_lshlrev_b32 v2, 2, v2")
    e(f"ds_read_b32 v17, v2 offset:{MS}")
    e("s_waitcnt lgkmcnt(0)")
    nop(1)
    for rr in (8, 4, 2, 1):
        e(f"v_max_f32_dpp v17, v17, v17 row_ror:{rr} row_mask:0xf bank_mask:0xf")
        nop(2)
    allreduce_g([17], [19], op="v_max_f32")
    e("v_sub_f32 v19, v16, v17")
    e(f"v_mul_f32 v19, {LOG2E:#x}, v19")
    e("v_exp_f32 v19, v19")
    nop(1)
    for a in ACC + [18]: e(f"v_mul_f32 v{a}, v{a}, v19")
    allreduce_g(ACC + [18], [40+i for i in range(9)])
    e("v_and_b32 v2, 15, v0")
    e("v_lshlrev_b32 v2, 5, v2")
    e("v_add_u32 v2, s78, v2")
    e(f"ds_write_b128 v2, v[{ACC[0]}:{ACC[3]}] offset:{OP}")
    e(f"ds_write_b128 v2, v[{ACC[4]}:{ACC[7]}] offset:{OP+16}")
    e("v_mov_b32 v2, s69")
    e("v_lshlrev_b32 v2, 2, v2")
    e(f"ds_write_b32 v2, v18 offset:{LP}")
    e("s_waitcnt lgkmcnt(0)")
    e("s_barrier")
    L = f"Lo{int(ffn)}"
    e("s_cmp_ge_u32 s69, 2")
    e(f"s_cbranch_scc1 {L}_a")
    e("v_lshlrev_b32 v2, 2, v0")
    for w in range(16): e(f"ds_read_b32 v{40+w}, v2 offset:{OP+512*w}")
    e("s_waitcnt lgkmcnt(0)")
    for w in range(1, 16): e(f"v_add_f32 v40, v40, v{40+w}")
    e(f"ds_write_b32 v2, v40 offset:{OS}")
    e(f"s_branch {L}_b")
    lab(f"{L}_a")
    e("s_cmp_lg_u32 s69, 2")
    e(f"s_cbranch_scc1 {L}_c")
    e("v_lshlrev_b32 v2, 2, v0")
    e("v_mov_b32 v3, 0")
    e(f"ds_write_b32 v2, v3 offset:{OS}")
    e(f"s_branch {L}_b")
    lab(f"{L}_c")
    e("s_cmp_lg_u32 s69, 3")
    e(f"s_cbranch_scc1 {L}_b")
    e("v_mov_b32 v2, 0")
    for r in range(4): e(f"ds_read_b128 v[{40+4*r}:{43+4*r}], v2 offset:{LP+16*r}")
    e("s_waitcnt lgkmcnt(0)")
    for w in range(1, 16): e(f"v_add_f32 v40, v40, v{40+w}")
    e("v_mov_b32 v41, v40")
    e("v_mov_b32 v40, v17")
    e("v_mov_b32 v2, s92")
    e(f"buffer_store_dwordx2 v[40:41], v2, s[{SWS}:{SWS+3}], 0 offen")
    lab(f"{L}_b")
    e("s_waitcnt lgkmcnt(0)")
    e("s_barrier")
    e("v_lshlrev_b32 v2, 2, v22")
    for i in range(11): e(f"ds_read_b32 v{40+i}, v2 offset:{OS+48*i}")
    for a in ACC: e(f"v_mov_b32 v{a}, 0")
    e("s_waitcnt lgkmcnt(0)")
    for i in range(11):
        vm.wait(f'wo{i}')
        for j in range(4):
            w = WO[i] + j
            e(f"v_lshlrev_b32 v19, 16, v{w}")
            e(f"v_and_b32 v20, 0xffff0000, v{w}")
            e(f"v_fmac_f32 v{ACC[2*j]}, v{40+i}, v19")
            e(f"v_fmac_f32 v{ACC[2*j+1]}, v{40+i}, v20")
    e("v_mov_b32 v3, 2560")
    e("v_mul_u32_u24 v2, v22, v3")
    e("v_lshl_add_u32 v2, v23, 5, v2")
    e(f"ds_write_b128 v2, v[{ACC[0]}:{ACC[3]}] offset:{YP}")
    e(f"ds_write_b128 v2, v[{ACC[4]}:{ACC[7]}] offset:{YP+16}")
    e("s_waitcnt lgkmcnt(0)")
    e("s_barrier")
    e("s_cmp_ge_u32 s69, 10")
    e("s_cbranch_scc1 Lk1_end")
    e("v_lshlrev_b32 v2, 2, v0")
    for gq in range(12): e(f"ds_read_b32 v{40+gq}, v2 offset:{YP+2560*gq}")
    e("s_waitcnt lgkmcnt(0)")
    for gq in range(1, 12): e(f"v_add_f32 v40, v40, v{40+gq}")
    e("v_add_u32 v2, s93, v2")
    e(f"buffer_store_dword v40, v2, s[{SWS}:{SWS+3}], 0 offen")
    e("s_branch Lk1_end")

def k1():
    lab(f"{NAME}_k1_kernel")
    e("s_cmp_ge_u32 s2, 256")
    e("s_cbranch_scc1 Lk1_end")
    e("s_load_dwordx16 s[16:31], s[0:1], 0")
    e("s_load_dwordx2 s[32:33], s[0:1], 88")
    e("v_lshrrev_b32 v2, 6, v0")
    nop(1)
    e("v_readfirstlane_b32 s69, v2")
    e("s_and_b32 s3, s2, 31")
    e("s_lshr_b32 s4, s2, 5")
    e("s_and_b32 s5, s4, 1")
    e("s_lshr_b32 s6, s4, 1")
    e("s_mul_i32 s70, s69, 40")
    e("s_lshl_b32 s71, s2, 5")
    e("s_mul_i32 s72, s2, 20480")
    e("s_lshl_b32 s73, s69, 14")
    e("s_mov_b32 s74, 4096"); e("s_mov_b32 s75, 8192"); e("s_mov_b32 s76, 12288")
    e("s_lshl_b32 s77, s5, 12")
    e("s_lshl_b32 s78, s69, 9")
    e("s_lshl_b32 s79, s69, 7")
    for i in range(10): e(f"s_mov_b32 s{80+i}, {i*8192}")
    e("s_mul_i32 s90, s2, 5120")
    e(f"s_add_u32 s90, s90, {Y2_OFF}")
    e("s_lshl_b32 s92, s2, 3")
    e(f"s_add_u32 s92, s92, {ML_OFF}")
    e("s_mul_i32 s93, s2, 2560")
    e("s_waitcnt lgkmcnt(0)")
    srd(SX, 16, 17, 2560)
    e("s_lshl_b32 s7, s5, 5")
    e("s_add_u32 s7, s7, s3")
    e("s_lshl_b32 s7, s7, 20")
    e("s_lshl_b32 s8, s6, 18")
    e("s_add_u32 s7, s7, s8")
    e("s_add_u32 s10, s18, s7"); e("s_addc_u32 s11, s19, 0")
    srd(SK, 10, 11, 262144)
    e("s_add_u32 s10, s20, s7"); e("s_addc_u32 s11, s21, 0")
    srd(SV, 10, 11, 262144)
    e("s_lshl_b32 s7, s3, 8")
    e("s_add_u32 s10, s22, s7"); e("s_addc_u32 s11, s23, 0")
    e(f"s_sub_u32 s8, {640*8192}, s7")
    srd(SWQ, 10, 11, "s8")
    e("s_mul_i32 s7, s3, 163840")
    e("s_add_u32 s10, s24, s7"); e("s_addc_u32 s11, s25, 0")
    e(f"s_sub_u32 s8, {4096*1280}, s7")
    srd(SWO, 10, 11, "s8")
    srd(SW1, 28, 29, 640*3456)
    srd(SW2, 30, 31, 1728*1280)
    srd(SWS, 32, 33, 4 << 20)
    e("s_cmp_lt_u32 s2, 108")
    e("s_cbranch_scc1 Lk1_ffn")
    k1_body(False)
    lab("Lk1_ffn")
    k1_body(True)
    lab("Lk1_end")
    e("s_endpgm")

def k2():
    W, RA, RB = 0, 512, 1536
    lab(f"{NAME}_k2_kernel")
    e("s_cmp_ge_u32 s2, 40")
    e("s_cbranch_scc1 Lk2_end")
    e("s_load_dwordx2 s[16:17], s[0:1], 0")
    e("s_load_dwordx2 s[18:19], s[0:1], 64")
    e("s_load_dwordx2 s[20:21], s[0:1], 72")
    e("s_load_dwordx2 s[22:23], s[0:1], 88")
    e("s_cmp_ge_u32 s2, 20")
    e("s_cselect_b32 s3, 1, 0")
    e("s_mul_i32 s4, s3, 20")
    e("s_sub_u32 s4, s2, s4")
    e("s_waitcnt lgkmcnt(0)")
    srd(36, 16, 17, 2560)
    srd(40, 18, 19, 1280)
    srd(44, 20, 21, 2560)
    srd(48, 22, 23, 2 << 20)
    e(f"s_add_u32 s24, s22, {Y2_OFF}"); e("s_addc_u32 s25, s23, 0")
    srd(52, 24, 25, 108*5120)
    e("v_lshrrev_b32 v1, 5, v0")
    e("v_and_b32 v2, 31, v0")
    e("v_and_b32 v3, 127, v0")
    e("v_lshrrev_b32 v4, 2, v3")
    e("v_and_b32 v5, 3, v3")
    e("v_lshl_add_u32 v4, v5, 6, v4")
    e("s_lshl_b32 s5, s3, 5")
    e("v_add_u32 v4, s5, v4")
    e("v_lshlrev_b32 v4, 3, v4")
    e(f"v_add_u32 v4, {ML_OFF}, v4")
    e("buffer_load_dwordx2 v[6:7], v4, s[48:51], 0 offen")
    e("v_lshrrev_b32 v4, 2, v1")
    e("v_and_b32 v5, 3, v1")
    e("v_lshl_add_u32 v4, v5, 6, v4")
    e("v_add_u32 v4, s5, v4")
    e("v_mov_b32 v5, 2560")
    e("v_mul_u32_u24 v4, v4, v5")
    e("s_lshl_b32 s6, s4, 7")
    e("v_lshl_add_u32 v4, v2, 2, v4")
    e("v_add_u32 v4, s6, v4")
    for i in range(16):
        e(f"buffer_load_dword v{16+i}, v4, s[48:51], 0 offen")
        if i < 15: e("v_add_u32 v4, 5120, v4")
    e("v_lshlrev_b32 v4, 1, v1")
    e("v_add_u32 v4, s3, v4")
    e("v_mul_u32_u24 v4, v4, v5")
    e("v_lshl_add_u32 v4, v2, 2, v4")
    e("v_add_u32 v4, s6, v4")
    for i in range(14):
        e(f"buffer_load_dword v{32+i}, v4, s[52:55], 0 offen")
        if i < 13: e("v_add_u32 v4, 40960, v4")
    e("v_and_b32 v4, 63, v0")
    e("v_mul_u32_u24 v4, 20, v4")
    e("s_mul_i32 s7, s3, 1280")
    e("v_add_u32 v5, s7, v4")
    e("buffer_load_dwordx4 v[48:51], v5, s[36:39], 0 offen")
    e("buffer_load_dword v52, v5, s[36:39], 0 offen offset:16")
    e("buffer_load_dwordx4 v[56:59], v4, s[40:43], 0 offen")
    e("buffer_load_dword v60, v4, s[40:43], 0 offen offset:16")
    e("s_waitcnt vmcnt(34)")
    e("v_mov_b32 v8, v6")
    nop(2)
    e("v_max_f32_dpp v8, v8, v8 quad_perm:[1,0,3,2] row_mask:0xf bank_mask:0xf")
    nop(2)
    e("v_max_f32_dpp v8, v8, v8 quad_perm:[2,3,0,1] row_mask:0xf bank_mask:0xf")
    e("v_sub_f32 v9, v6, v8")
    e(f"v_mul_f32 v9, {LOG2E:#x}, v9")
    e("v_exp_f32 v9, v9")
    nop(1)
    e("v_mul_f32 v10, v9, v7")
    nop(2)
    e("v_add_f32_dpp v10, v10, v10 quad_perm:[1,0,3,2] row_mask:0xf bank_mask:0xf")
    nop(2)
    e("v_add_f32_dpp v10, v10, v10 quad_perm:[2,3,0,1] row_mask:0xf bank_mask:0xf")
    e("v_rcp_f32 v10, v10")
    nop(1)
    e("v_mul_f32 v9, v9, v10")
    e("v_lshlrev_b32 v4, 2, v3")
    e(f"ds_write_b32 v4, v9 offset:{W}")
    e("s_waitcnt lgkmcnt(0)")
    e("s_barrier")
    e("v_lshlrev_b32 v4, 2, v1")
    for i in range(16): e(f"ds_read_b32 v{64+i}, v4 offset:{W+32*i}")
    e("s_waitcnt lgkmcnt(0)")
    e("s_waitcnt vmcnt(18)")
    e("v_mul_f32 v8, v16, v64")
    for i in range(1, 16): e(f"v_fmac_f32 v8, v{16+i}, v{64+i}")
    e("s_waitcnt vmcnt(4)")
    e("v_add_f32 v9, v32, v33")
    for i in range(2, 14): e(f"v_add_f32 v9, v9, v{32+i}")
    e("v_lshlrev_b32 v4, 2, v0")
    e(f"ds_write_b32 v4, v8 offset:{RA}")
    e(f"ds_write_b32 v4, v9 offset:{RB}")
    e("s_waitcnt vmcnt(0)")
    e("v_mov_b32 v10, 0")
    for j in range(5):
        e(f"v_lshlrev_b32 v11, 16, v{48+j}")
        e(f"v_lshlrev_b32 v12, 16, v{56+j}")
        e("v_mul_f32 v11, v11, v12")
        e(f"v_and_b32 v12, 0xffff0000, v{48+j}")
        e(f"v_and_b32 v13, 0xffff0000, v{56+j}")
        e("v_mul_f32 v12, v12, v13")
        e("v_cvt_pk_bf16_f32 v11, v11, v12")
        e("v_lshlrev_b32 v12, 16, v11")
        e("v_and_b32 v11, 0xffff0000, v11")
        e("v_add_f32 v10, v10, v12")
        e("v_add_f32 v10, v10, v11")
    for rr in (8, 4, 2, 1):
        nop(2)
        e(f"v_add_f32_dpp v10, v10, v10 row_ror:{rr} row_mask:0xf bank_mask:0xf")
    allreduce_g([10], [11])
    e("v_cvt_pk_bf16_f32 v10, v10, v10")
    e("v_lshlrev_b32 v10, 16, v10")
    e("v_mul_f32 v10, 0xbfb8aa3b, v10")
    e("v_exp_f32 v10, v10")
    nop(1)
    e("v_add_f32 v10, 1.0, v10")
    e("v_rcp_f32 v10, v10")
    nop(1)
    e("v_cvt_pk_bf16_f32 v10, v10, v10")
    e("v_lshlrev_b32 v10, 16, v10")
    e("v_sub_f32 v11, 1.0, v10")
    e("v_cvt_pk_bf16_f32 v11, v11, v11")
    e("v_lshlrev_b32 v11, 16, v11")
    e("s_waitcnt lgkmcnt(0)")
    e("s_barrier")
    e("v_lshlrev_b32 v4, 2, v2")
    for r in range(8):
        e(f"ds_read_b32 v{16+r}, v4 offset:{RA+128*r}")
        e(f"ds_read_b32 v{32+r}, v4 offset:{RB+128*r}")
    e("s_waitcnt lgkmcnt(0)")
    for r in range(1, 8):
        e(f"v_add_f32 v16, v16, v{16+r}")
        e(f"v_add_f32 v32, v32, v{32+r}")
    e("v_cvt_pk_bf16_f32 v16, v16, v32")
    e("v_lshlrev_b32 v17, 16, v16")
    e("v_and_b32 v18, 0xffff0000, v16")
    e("v_mul_f32 v17, v10, v17")
    e("v_mul_f32 v18, v11, v18")
    e("v_cvt_pk_bf16_f32 v16, v17, v18")
    e("v_lshlrev_b32 v17, 16, v16")
    e("v_and_b32 v18, 0xffff0000, v16")
    e("v_add_f32 v17, v17, v18")
    e("v_cvt_pk_bf16_f32 v17, v17, v17")
    e("v_cmp_gt_u32 vcc, 32, v0")
    e("s_and_saveexec_b64 s[8:9], vcc")
    e("s_cbranch_execz Lk2_end")
    e("v_lshlrev_b32 v4, 1, v2")
    e("s_lshl_b32 s6, s4, 6")
    e("v_add_u32 v4, s6, v4")
    e("v_add_u32 v4, s7, v4")
    e("buffer_store_short v17, v4, s[44:47], 0 offen")
    lab("Lk2_end")
    e("s_endpgm")

hdr = open(f"cdna_kernels/{NAME}.s.ref").read().split("; Override launch")[0]
o = [hdr.rstrip("\n")]
o.append(f"; @launch kernel={NAME}_k1_kernel grid=(256,1,1) block=(1024,1,1) lds={LDS1}")
o.append(f"; @launch kernel={NAME}_k2_kernel grid=(40,1,1) block=(256,1,1) lds=4096")
o.append('.amdgcn_target "amdgcn-amd-amdhsa--gfx950"')
o.append(".text")
for k in ("k1", "k2"):
    o.append(f".globl {NAME}_{k}_kernel")
    o.append(f".type {NAME}_{k}_kernel,@function")
o.append(".p2align 8")
k1()
out.append(".p2align 8")
k2()
o += out
o.append('.section .rodata,"a"')
for k, nv in (("k1", 128), ("k2", 96)):
    o.append(".p2align 6")
    o.append(f".amdhsa_kernel {NAME}_{k}_kernel")
    o.append(f"  .amdhsa_next_free_vgpr {nv}")
    o.append("  .amdhsa_next_free_sgpr 96")
    o.append(f"  .amdhsa_accum_offset {nv}")
    o.append("  .amdhsa_group_segment_fixed_size 0")
    o.append("  .amdhsa_kernarg_size 96")
    o.append("  .amdhsa_user_sgpr_count 2")
    o.append("  .amdhsa_user_sgpr_kernarg_segment_ptr 1")
    o.append("  .amdhsa_system_sgpr_workgroup_id_x 1")
    o.append(".end_amdhsa_kernel")
open(sys.argv[1], "w").write("\n".join(o) + "\n")
```

```python
import sys
NAME = "gated_mix__mha_block_cached__dense_activation_silu__decode"
OPT = sys.argv[2] if len(sys.argv) > 2 else "nt,D8"
NT = " nt" if 'nt' in OPT else ""
import re as _re
DEPTH = int(_re.search(r"D(\d+)", OPT).group(1))
out = []
def e(s): out.append("    " + s)
def lab(s): out.append(s + ":")
def nop(n): e(f"s_nop {n-1}")

XS, QP, QB, HP, HS, MS, LP, OS, OP, YP = 0, 8192, 16384, 16640, 18688, 18816, 19072, 19200, 20480, 28672
LDS1 = 28672 + 13 * 2560
Y_OFF, ML_OFF, Y2_OFF = 0, 1 << 20, 2 << 20
LOG2E = 0x3fb8aa3b
SCALE = 0x3db504f3

STAMP = 'stamp' in OPT
stamp_n = [0]
def stamp():
    if not STAMP: return
    k = stamp_n[0]; stamp_n[0] += 1
    e(f"s_memrealtime s[{94}:{95}]")
    e("s_waitcnt lgkmcnt(0)")
    e(f"v_writelane_b32 v126, s94, {k}")
class VM:
    def __init__(s): s.l = []
    def issue(s, tag): s.l.append(tag)
    def wait(s, tag):
        n = len(s.l) - 1 - s.l.index(tag)
        e(f"s_waitcnt vmcnt({n})")

def allreduce_g(regs, tmp, op="v_add_f32"):
    for r, t in zip(regs, tmp): e(f"v_mov_b32 v{t}, v{r}")
    nop(2)
    for r, t in zip(regs, tmp): e(f"v_permlane16_swap_b32 v{r}, v{t}")
    for r, t in zip(regs, tmp): e(f"{op} v{r}, v{r}, v{t}")
    for r, t in zip(regs, tmp): e(f"v_mov_b32 v{t}, v{r}")
    nop(2)
    for r, t in zip(regs, tmp): e(f"v_permlane32_swap_b32 v{r}, v{t}")
    for r, t in zip(regs, tmp): e(f"{op} v{r}, v{r}, v{t}")

def srd(d, lo, hi, nrec):
    e(f"s_mov_b32 s{d}, s{lo}")
    e(f"s_and_b32 s{d+1}, s{hi}, 0xffff")
    e(f"s_mov_b32 s{d+2}, {nrec}")
    e(f"s_mov_b32 s{d+3}, 0x00020000")

SX, SK, SV, SWQ, SWO, SW1, SW2, SWS = 36, 40, 44, 48, 52, 56, 60, 64

def k1_body(ffn):
    vm = VM()
    stamp_n[0] = 0
    stamp()
    D = DEPTH
    WIN = [24 + 4*i for i in range(8)]
    WQ = [56 + 4*i for i in range(10)]
    KR = [WIN[i % D] for i in range(16)]
    VR = [WIN[(16 + i) % D] for i in range(16)]
    WO = [56 + 4*i for i in range(11)]
    S = [100 + i for i in range(16)]
    ACC = [116 + i for i in range(8)]
    W1 = [100 + i for i in range(5)]
    W2 = [105 + i for i in range(16)]
    Q = [4, 5, 6, 7]
    e("v_lshlrev_b32 v2, 1, v0")
    e(f"buffer_load_ushort v16, v2, s[{SX}:{SX+3}], 0 offen"); vm.issue('x0')
    e(f"buffer_load_ushort v17, v2, s[{SX}:{SX+3}], 0 offen offset:1280"); vm.issue('x1')
    e("v_bfe_u32 v8, v0, 4, 2")
    e("v_and_b32 v9, 15, v0")
    e("v_mul_u32_u24 v3, 10, v8")
    e("v_add_u32 v3, s70, v3")
    e("v_lshlrev_b32 v3, 13, v3")
    e("v_lshl_add_u32 v3, v9, 4, v3")
    for i in range(10):
        e(f"buffer_load_dwordx4 v[{WQ[i]}:{WQ[i]+3}], v3, s[{SWQ}:{SWQ+3}], s{80+i} offen"); vm.issue(f'wq{i}')
    if ffn:
        e("v_lshrrev_b32 v10, 3, v0")
        e("v_mul_u32_u24 v10, 5, v10")
        e("v_mov_b32 v11, 3456")
        e("v_mul_u32_u24 v10, v10, v11")
        e("v_and_b32 v11, 7, v0")
        e("v_lshl_add_u32 v10, v11, 2, v10")
        e("v_add_u32 v10, s71, v10")
        for i in range(5):
            e(f"buffer_load_dword v{W1[i]}, v10, s[{SW1}:{SW1+3}], 0 offen"); vm.issue(f'w1{i}')
            if i < 4: e("v_add_u32 v10, 3456, v10")
        e("v_lshlrev_b32 v10, 2, v0")
        e("v_add_u32 v10, s72, v10")
        for r in range(16):
            e(f"buffer_load_dword v{W2[r]}, v10, s[{SW2}:{SW2+3}], 0 offen"); vm.issue(f'w2{r}')
            if r < 15: e("v_add_u32 v10, 1280, v10")
    stamp()
    e("s_barrier")
    stamp()
    e("v_lshlrev_b32 v1, 8, v8")
    e("v_add_u32 v1, s73, v1")
    e("v_lshl_add_u32 v1, v9, 4, v1")
    def kv_load(reg, srdb, i, tag):
        so = ["0", "s74", "s75", "s76"][i // 4]
        e(f"buffer_load_dwordx4 v[{reg}:{reg+3}], v1, s[{srdb}:{srdb+3}], {so} offen offset:{(i%4)*1024}{NT}"); vm.issue(tag)
    def stream(n):
        if n < 16: kv_load(KR[n], SK, n, f'k{n}')
        elif n < 32: kv_load(VR[n-16], SV, n-16, f'v{n-16}')
    for i in range(D): stream(i)
    vm.wait('x1')
    stamp()
    e("v_lshlrev_b32 v16, 16, v16")
    e("v_lshlrev_b32 v17, 16, v17")
    e("v_lshlrev_b32 v2, 2, v0")
    e(f"ds_write_b32 v2, v16 offset:{XS}")
    e(f"ds_write_b32 v2, v17 offset:{XS+4096}")
    e("s_waitcnt lgkmcnt(0)")
    e("s_barrier")
    stamp()
    e("v_mul_u32_u24 v2, 10, v8")
    e("v_add_u32 v2, s70, v2")
    e("v_lshlrev_b32 v2, 2, v2")
    e("v_add_u32 v2, s77, v2")
    QA = [8+i for i in range(8)]
    e("v_mov_b32 v22, v8")
    e("v_mov_b32 v23, v9")
    for a in QA: e(f"v_mov_b32 v{a}, 0")
    for half in range(2):
        for k in range(3):
            pass
        e(f"ds_read_b64 v[16:17], v2 offset:{XS+half*20}")
        e(f"ds_read_b64 v[18:19], v2 offset:{XS+half*20+8}")
        e(f"ds_read_b32 v20, v2 offset:{XS+half*20+16}")
        e("s_waitcnt lgkmcnt(0)")
        for ii in range(5):
            i = half*5 + ii
            vm.wait(f'wq{i}')
            if i in (0, 9): stamp()
            for j in range(4):
                w = WQ[i] + j
                e(f"v_lshlrev_b32 v21, 16, v{w}")
                e(f"v_and_b32 v3, 0xffff0000, v{w}")
                e(f"v_fmac_f32 v{QA[2*j]}, v{16+ii}, v21")
                e(f"v_fmac_f32 v{QA[2*j+1]}, v{16+ii}, v3")
    allreduce_g(QA, [16+i for i in range(6)] + [2, 3])
    e("v_lshlrev_b32 v2, 5, v23")
    e("v_add_u32 v2, s78, v2")
    e(f"ds_write_b128 v2, v[8:11] offset:{QP}")
    e(f"ds_write_b128 v2, v[12:15] offset:{QP+16}")
    if ffn:
        e("v_lshrrev_b32 v2, 3, v0")
        e("v_mul_u32_u24 v2, 20, v2")
        for i in range(5):
            e(f"ds_read_b32 v{8+i}, v2 offset:{XS+4*i}")
            e(f"ds_read_b32 v{13+i}, v2 offset:{XS+4096+4*i}")
        for a in (18, 19, 20, 21): e(f"v_mov_b32 v{a}, 0")
        e("s_waitcnt lgkmcnt(0)")
        vm.wait('w14')
        for i in range(5):
            e(f"v_lshlrev_b32 v2, 16, v{W1[i]}")
            e(f"v_and_b32 v3, 0xffff0000, v{W1[i]}")
            e(f"v_fmac_f32 v18, v{8+i}, v2")
            e(f"v_fmac_f32 v19, v{8+i}, v3")
            e(f"v_fmac_f32 v20, v{13+i}, v2")
            e(f"v_fmac_f32 v21, v{13+i}, v3")
        nop(2)
        for a in (18, 19, 20, 21):
            e(f"v_add_f32_dpp v{a}, v{a}, v{a} row_ror:8 row_mask:0xf bank_mask:0xf")
        allreduce_g([18, 19, 20, 21], [8, 9, 10, 11])
        e("v_and_b32 v2, 7, v0")
        e("v_lshlrev_b32 v2, 3, v2")
        e("v_add_u32 v2, s79, v2")
        e(f"ds_write_b64 v2, v[18:19] offset:{HP}")
        e(f"ds_write_b64 v2, v[20:21] offset:{HP+64}")
    e("s_waitcnt lgkmcnt(0)")
    e("s_barrier")
    stamp()
    L = f"Lq{int(ffn)}"
    e("s_cmp_ge_u32 s69, 2")
    e(f"s_cbranch_scc1 {L}_a")
    e("v_lshlrev_b32 v2, 2, v0")
    for w in range(16):
        e(f"ds_read_b32 v{8+w}, v2 offset:{QP+512*w}") if w < 14 else None
    e("s_waitcnt lgkmcnt(0)")
    for w in range(1, 14): e(f"v_add_f32 v8, v8, v{8+w}")
    e(f"ds_read_b32 v9, v2 offset:{QP+512*14}")
    e(f"ds_read_b32 v10, v2 offset:{QP+512*15}")
    e("s_waitcnt lgkmcnt(0)")
    e("v_add_f32 v8, v8, v9")
    e("v_add_f32 v8, v8, v10")
    e("v_cvt_pk_bf16_f32 v8, v8, v8")
    e("v_lshlrev_b32 v2, 1, v0")
    e(f"ds_write_b16 v2, v8 offset:{QB}")
    e(f"s_branch {L}_b")
    lab(f"{L}_a")
    if ffn:
        e("s_cmp_lg_u32 s69, 2")
        e(f"s_cbranch_scc1 {L}_b")
        e("v_and_b32 v2, 31, v0")
        e("v_lshlrev_b32 v2, 2, v2")
        for w in range(14): e(f"ds_read_b32 v{8+w}, v2 offset:{HP+128*w}")
        e("s_waitcnt lgkmcnt(0)")
        for w in range(1, 14): e(f"v_add_f32 v8, v8, v{8+w}")
        e(f"ds_read_b32 v9, v2 offset:{HP+128*14}")
        e(f"ds_read_b32 v10, v2 offset:{HP+128*15}")
        e("s_waitcnt lgkmcnt(0)")
        e("v_add_f32 v8, v8, v9")
        e("v_add_f32 v8, v8, v10")
        e("v_cvt_pk_bf16_f32 v8, v8, v8")
        e("v_lshlrev_b32 v8, 16, v8")
        e(f"v_mul_f32 v9, 0xbfb8aa3b, v8")
        e("v_exp_f32 v9, v9")
        nop(1)
        e("v_add_f32 v9, 1.0, v9")
        e("v_rcp_f32 v9, v9")
        nop(1)
        e("v_mul_f32 v8, v8, v9")
        e("v_cvt_pk_bf16_f32 v8, v8, v8")
        e("v_lshlrev_b32 v8, 16, v8")
        e(f"ds_write_b32 v2, v8 offset:{HS}")
    lab(f"{L}_b")
    e("s_waitcnt lgkmcnt(0)")
    e("s_barrier")
    stamp()
    e("v_lshlrev_b32 v2, 4, v23")
    e(f"ds_read_b128 v[4:7], v2 offset:{QB}")
    if ffn:
        e("v_mov_b32 v2, 0")
        for r in range(4):
            e(f"ds_read_b128 v[{8+4*r}:{11+4*r}], v2 offset:{HS+16*r}")
        e("s_waitcnt lgkmcnt(0)")
        vm.wait('w215')
        for a in (122, 123, 124, 125): e(f"v_mov_b32 v{a}, 0")
        for r in range(16):
            e(f"v_lshlrev_b32 v2, 16, v{W2[r]}")
            e(f"v_and_b32 v3, 0xffff0000, v{W2[r]}")
            e(f"v_fmac_f32 v122, v{8+r}, v2")
            e(f"v_fmac_f32 v123, v{8+r}, v3")
        e("v_mov_b32 v2, 0")
        for r in range(4):
            e(f"ds_read_b128 v[{8+4*r}:{11+4*r}], v2 offset:{HS+64+16*r}")
        e("s_waitcnt lgkmcnt(0)")
        for r in range(16):
            e(f"v_lshlrev_b32 v2, 16, v{W2[r]}")
            e(f"v_and_b32 v3, 0xffff0000, v{W2[r]}")
            e(f"v_fmac_f32 v124, v{8+r}, v2")
            e(f"v_fmac_f32 v125, v{8+r}, v3")
        e("s_cmp_ge_u32 s69, 5")
        e(f"s_cbranch_scc1 Ly2skip")
        e("v_lshlrev_b32 v2, 3, v0")
        e("v_add_u32 v2, s90, v2")
        e(f"buffer_store_dwordx2 v[122:123], v2, s[{SWS}:{SWS+3}], 0 offen")
        e(f"buffer_store_dwordx2 v[124:125], v2, s[{SWS}:{SWS+3}], 0 offen offset:2560")
        lab("Ly2skip")
        nop(2)
    e("s_waitcnt lgkmcnt(0)")
    stamp()
    for grp in range(4):
        ids = list(range(4*grp, 4*grp+4))
        vm.wait(f'k{ids[-1]}')
        for j in range(4):
            for i in ids:
                src2 = "0" if j == 0 else f"v{S[i]}"
                e(f"v_dot2_f32_bf16 v{S[i]}, v{KR[i]+j}, v{Q[j]}, {src2}")
        nop(3)
        for rr in (8, 4, 2, 1):
            for i in ids:
                e(f"v_add_f32_dpp v{S[i]}, v{S[i]}, v{S[i]} row_ror:{rr} row_mask:0xf bank_mask:0xf")
            if rr != 1: nop(1)
        for i in ids: stream(i + D)
    stamp()
    e("v_mov_b32 v3, 52429")
    e("v_mul_u32_u24 v2, v0, v3")
    e("v_lshrrev_b32 v22, 22, v2")
    e("v_mul_u32_u24 v3, 80, v22")
    e("v_sub_u32 v23, v0, v3")
    e("v_mov_b32 v3, 1280")
    e("v_mul_u32_u24 v21, v22, v3")
    e("v_lshl_add_u32 v21, v23, 4, v21")
    def wo_load(i):
        e(f"v_add_u32 v2, {i*15360}, v21")
        e(f"buffer_load_dwordx4 v[{WO[i]}:{WO[i]+3}], v2, s[{SWO}:{SWO+3}], 0 offen"); vm.issue(f'wo{i}')
    for rep in range(2):
        for i in range(0, 16, 2):
            e(f"v_cvt_pk_bf16_f32 v2, v{S[i]}, v{S[i+1]}")
            e(f"v_lshlrev_b32 v{S[i]}, 16, v2")
            e(f"v_and_b32 v{S[i+1]}, 0xffff0000, v2")
        if rep == 0:
            for i in range(16): e(f"v_mul_f32 v{S[i]}, {SCALE:#x}, v{S[i]}")
    e(f"v_max3_f32 v16, v{S[0]}, v{S[1]}, v{S[2]}")
    for i in range(3, 15, 2): e(f"v_max3_f32 v16, v16, v{S[i]}, v{S[i+1]}")
    e(f"v_max_f32 v16, v16, v{S[15]}")
    e(f"v_mul_f32 v17, 0xbfb8aa3b, v16")
    e(f"s_mov_b32 s91, {LOG2E:#x}")
    for i in range(16): e(f"v_fma_f32 v{S[i]}, v{S[i]}, s91, v17")
    for i in range(16): e(f"v_exp_f32 v{S[i]}, v{S[i]}")
    nop(1)
    e(f"v_add_f32 v18, v{S[0]}, v{S[1]}")
    for i in range(2, 16): e(f"v_add_f32 v18, v18, v{S[i]}")
    for a in ACC: e(f"v_mov_b32 v{a}, 0")
    for i in range(16):
        vm.wait(f'v{i}')
        for j in range(4):
            w = VR[i] + j
            e(f"v_lshlrev_b32 v19, 16, v{w}")
            e(f"v_and_b32 v20, 0xffff0000, v{w}")
            e(f"v_fmac_f32 v{ACC[2*j]}, v{S[i]}, v19")
            e(f"v_fmac_f32 v{ACC[2*j+1]}, v{S[i]}, v20")
        stream(16 + i + D)
        if i < 11: wo_load(i)
    stamp()
    e("v_bfe_u32 v2, v0, 4, 6")
    e("v_lshlrev_b32 v2, 2, v2")
    e(f"ds_write_b32 v2, v16 offset:{MS}")
    e("s_waitcnt lgkmcnt(0)")
    e("s_barrier")
    stamp()
    e("v_and_b32 v2, 63, v0")
    e("v_lshlrev_b32 v2, 2, v2")
    e(f"ds_read_b32 v17, v2 offset:{MS}")
    e("s_waitcnt lgkmcnt(0)")
    nop(1)
    for rr in (8, 4, 2, 1):
        e(f"v_max_f32_dpp v17, v17, v17 row_ror:{rr} row_mask:0xf bank_mask:0xf")
        nop(2)
    allreduce_g([17], [19], op="v_max_f32")
    e("v_sub_f32 v19, v16, v17")
    e(f"v_mul_f32 v19, {LOG2E:#x}, v19")
    e("v_exp_f32 v19, v19")
    nop(1)
    for a in ACC + [18]: e(f"v_mul_f32 v{a}, v{a}, v19")
    allreduce_g(ACC + [18], [40+i for i in range(9)])
    e("v_and_b32 v2, 15, v0")
    e("v_lshlrev_b32 v2, 5, v2")
    e("v_add_u32 v2, s78, v2")
    e(f"ds_write_b128 v2, v[{ACC[0]}:{ACC[3]}] offset:{OP}")
    e(f"ds_write_b128 v2, v[{ACC[4]}:{ACC[7]}] offset:{OP+16}")
    e("v_mov_b32 v2, s69")
    e("v_lshlrev_b32 v2, 2, v2")
    e(f"ds_write_b32 v2, v18 offset:{LP}")
    e("s_waitcnt lgkmcnt(0)")
    e("s_barrier")
    L = f"Lo{int(ffn)}"
    e("s_cmp_ge_u32 s69, 2")
    e(f"s_cbranch_scc1 {L}_a")
    e("v_lshlrev_b32 v2, 2, v0")
    for w in range(16): e(f"ds_read_b32 v{40+w}, v2 offset:{OP+512*w}")
    e("s_waitcnt lgkmcnt(0)")
    for w in range(1, 16): e(f"v_add_f32 v40, v40, v{40+w}")
    e(f"ds_write_b32 v2, v40 offset:{OS}")
    e(f"s_branch {L}_b")
    lab(f"{L}_a")
    e("s_cmp_lg_u32 s69, 2")
    e(f"s_cbranch_scc1 {L}_c")
    e("v_lshlrev_b32 v2, 2, v0")
    e("v_mov_b32 v3, 0")
    e(f"ds_write_b32 v2, v3 offset:{OS}")
    e(f"s_branch {L}_b")
    lab(f"{L}_c")
    e("s_cmp_lg_u32 s69, 3")
    e(f"s_cbranch_scc1 {L}_b")
    e("v_mov_b32 v2, 0")
    for r in range(4): e(f"ds_read_b128 v[{40+4*r}:{43+4*r}], v2 offset:{LP+16*r}")
    e("s_waitcnt lgkmcnt(0)")
    for w in range(1, 16): e(f"v_add_f32 v40, v40, v{40+w}")
    e("v_mov_b32 v41, v40")
    e("v_mov_b32 v40, v17")
    e("v_mov_b32 v2, s92")
    e(f"buffer_store_dwordx2 v[40:41], v2, s[{SWS}:{SWS+3}], 0 offen")
    lab(f"{L}_b")
    e("s_waitcnt lgkmcnt(0)")
    e("s_barrier")
    stamp()
    e("v_lshlrev_b32 v2, 2, v22")
    for i in range(11): e(f"ds_read_b32 v{40+i}, v2 offset:{OS+48*i}")
    for a in ACC: e(f"v_mov_b32 v{a}, 0")
    e("s_waitcnt lgkmcnt(0)")
    for i in range(11):
        vm.wait(f'wo{i}')
        for j in range(4):
            w = WO[i] + j
            e(f"v_lshlrev_b32 v19, 16, v{w}")
            e(f"v_and_b32 v20, 0xffff0000, v{w}")
            e(f"v_fmac_f32 v{ACC[2*j]}, v{40+i}, v19")
            e(f"v_fmac_f32 v{ACC[2*j+1]}, v{40+i}, v20")
    e("v_mov_b32 v3, 2560")
    e("v_mul_u32_u24 v2, v22, v3")
    e("v_lshl_add_u32 v2, v23, 5, v2")
    e(f"ds_write_b128 v2, v[{ACC[0]}:{ACC[3]}] offset:{YP}")
    e(f"ds_write_b128 v2, v[{ACC[4]}:{ACC[7]}] offset:{YP+16}")
    e("s_waitcnt lgkmcnt(0)")
    e("s_barrier")
    stamp()
    if STAMP:
        e("s_lshl_b32 s94, s2, 4")
        e("s_add_u32 s94, s94, s69")
        e("s_lshl_b32 s94, s94, 8")
        e(f"s_add_u32 s94, s94, {3<<20}")
        e("v_and_b32 v2, 63, v0")
        e("v_lshlrev_b32 v2, 2, v2")
        e("v_add_u32 v2, s94, v2")
        e(f"buffer_store_dword v126, v2, s[{SWS}:{SWS+3}], 0 offen")
    e("s_cmp_ge_u32 s69, 10")
    e("s_cbranch_scc1 Lk1_end")
    e("v_lshlrev_b32 v2, 2, v0")
    for gq in range(12): e(f"ds_read_b32 v{40+gq}, v2 offset:{YP+2560*gq}")
    e("s_waitcnt lgkmcnt(0)")
    for gq in range(1, 12): e(f"v_add_f32 v40, v40, v{40+gq}")
    e("v_add_u32 v2, s93, v2")
    e(f"buffer_store_dword v40, v2, s[{SWS}:{SWS+3}], 0 offen")
    e("s_branch Lk1_end")

def k1():
    lab(f"{NAME}_k1_kernel")
    e("s_cmp_ge_u32 s2, 256")
    e("s_cbranch_scc1 Lk1_end")
    e("s_load_dwordx16 s[16:31], s[0:1], 0")
    e("s_load_dwordx2 s[32:33], s[0:1], 88")
    e("v_lshrrev_b32 v2, 6, v0")
    nop(1)
    e("v_readfirstlane_b32 s69, v2")
    e("s_and_b32 s3, s2, 31")
    e("s_lshr_b32 s4, s2, 5")
    e("s_and_b32 s5, s4, 1")
    e("s_lshr_b32 s6, s4, 1")
    e("s_mul_i32 s70, s69, 40")
    e("s_lshl_b32 s71, s2, 5")
    e("s_mul_i32 s72, s2, 20480")
    e("s_lshl_b32 s73, s69, 14")
    e("s_mov_b32 s74, 4096"); e("s_mov_b32 s75, 8192"); e("s_mov_b32 s76, 12288")
    e("s_lshl_b32 s77, s5, 12")
    e("s_lshl_b32 s78, s69, 9")
    e("s_lshl_b32 s79, s69, 7")
    for i in range(10): e(f"s_mov_b32 s{80+i}, {i*8192}")
    e("s_mul_i32 s90, s2, 5120")
    e(f"s_add_u32 s90, s90, {Y2_OFF}")
    e("s_lshl_b32 s92, s2, 3")
    e(f"s_add_u32 s92, s92, {ML_OFF}")
    e("s_mul_i32 s93, s2, 2560")
    e("s_waitcnt lgkmcnt(0)")
    srd(SX, 16, 17, 2560)
    e("s_lshl_b32 s7, s5, 5")
    e("s_add_u32 s7, s7, s3")
    e("s_lshl_b32 s7, s7, 20")
    e("s_lshl_b32 s8, s6, 18")
    e("s_add_u32 s7, s7, s8")
    e("s_add_u32 s10, s18, s7"); e("s_addc_u32 s11, s19, 0")
    srd(SK, 10, 11, 262144)
    e("s_add_u32 s10, s20, s7"); e("s_addc_u32 s11, s21, 0")
    srd(SV, 10, 11, 262144)
    e("s_lshl_b32 s7, s3, 8")
    e("s_add_u32 s10, s22, s7"); e("s_addc_u32 s11, s23, 0")
    e(f"s_sub_u32 s8, {640*8192}, s7")
    srd(SWQ, 10, 11, "s8")
    e("s_mul_i32 s7, s3, 163840")
    e("s_add_u32 s10, s24, s7"); e("s_addc_u32 s11, s25, 0")
    e(f"s_sub_u32 s8, {4096*1280}, s7")
    srd(SWO, 10, 11, "s8")
    srd(SW1, 28, 29, 640*3456)
    srd(SW2, 30, 31, 1728*1280)
    srd(SWS, 32, 33, 8 << 20)
    e("s_cmp_lt_u32 s2, 108")
    e("s_cbranch_scc1 Lk1_ffn")
    k1_body(False)
    lab("Lk1_ffn")
    k1_body(True)
    lab("Lk1_end")
    e("s_endpgm")

def k2():
    W, RA, RB = 0, 512, 1536
    lab(f"{NAME}_k2_kernel")
    e("s_cmp_ge_u32 s2, 40")
    e("s_cbranch_scc1 Lk2_end")
    e("s_load_dwordx2 s[16:17], s[0:1], 0")
    e("s_load_dwordx2 s[18:19], s[0:1], 64")
    e("s_load_dwordx2 s[20:21], s[0:1], 72")
    e("s_load_dwordx2 s[22:23], s[0:1], 88")
    e("s_cmp_ge_u32 s2, 20")
    e("s_cselect_b32 s3, 1, 0")
    e("s_mul_i32 s4, s3, 20")
    e("s_sub_u32 s4, s2, s4")
    e("s_waitcnt lgkmcnt(0)")
    srd(36, 16, 17, 2560)
    srd(40, 18, 19, 1280)
    srd(44, 20, 21, 2560)
    srd(48, 22, 23, 2 << 20)
    e(f"s_add_u32 s24, s22, {Y2_OFF}"); e("s_addc_u32 s25, s23, 0")
    srd(52, 24, 25, 108*5120)
    e("v_lshrrev_b32 v1, 5, v0")
    e("v_and_b32 v2, 31, v0")
    e("v_and_b32 v3, 127, v0")
    e("v_lshrrev_b32 v4, 2, v3")
    e("v_and_b32 v5, 3, v3")
    e("v_lshl_add_u32 v4, v5, 6, v4")
    e("s_lshl_b32 s5, s3, 5")
    e("v_add_u32 v4, s5, v4")
    e("v_lshlrev_b32 v4, 3, v4")
    e(f"v_add_u32 v4, {ML_OFF}, v4")
    e("buffer_load_dwordx2 v[6:7], v4, s[48:51], 0 offen")
    e("v_lshrrev_b32 v4, 2, v1")
    e("v_and_b32 v5, 3, v1")
    e("v_lshl_add_u32 v4, v5, 6, v4")
    e("v_add_u32 v4, s5, v4")
    e("v_mov_b32 v5, 2560")
    e("v_mul_u32_u24 v4, v4, v5")
    e("s_lshl_b32 s6, s4, 7")
    e("v_lshl_add_u32 v4, v2, 2, v4")
    e("v_add_u32 v4, s6, v4")
    for i in range(16):
        e(f"buffer_load_dword v{16+i}, v4, s[48:51], 0 offen")
        if i < 15: e("v_add_u32 v4, 5120, v4")
    e("v_lshlrev_b32 v4, 1, v1")
    e("v_add_u32 v4, s3, v4")
    e("v_mul_u32_u24 v4, v4, v5")
    e("v_lshl_add_u32 v4, v2, 2, v4")
    e("v_add_u32 v4, s6, v4")
    for i in range(14):
        e(f"buffer_load_dword v{32+i}, v4, s[52:55], 0 offen")
        if i < 13: e("v_add_u32 v4, 40960, v4")
    e("v_and_b32 v4, 63, v0")
    e("v_mul_u32_u24 v4, 20, v4")
    e("s_mul_i32 s7, s3, 1280")
    e("v_add_u32 v5, s7, v4")
    e("buffer_load_dwordx4 v[48:51], v5, s[36:39], 0 offen")
    e("buffer_load_dword v52, v5, s[36:39], 0 offen offset:16")
    e("buffer_load_dwordx4 v[56:59], v4, s[40:43], 0 offen")
    e("buffer_load_dword v60, v4, s[40:43], 0 offen offset:16")
    e("s_waitcnt vmcnt(34)")
    e("v_mov_b32 v8, v6")
    nop(2)
    e("v_max_f32_dpp v8, v8, v8 quad_perm:[1,0,3,2] row_mask:0xf bank_mask:0xf")
    nop(2)
    e("v_max_f32_dpp v8, v8, v8 quad_perm:[2,3,0,1] row_mask:0xf bank_mask:0xf")
    e("v_sub_f32 v9, v6, v8")
    e(f"v_mul_f32 v9, {LOG2E:#x}, v9")
    e("v_exp_f32 v9, v9")
    nop(1)
    e("v_mul_f32 v10, v9, v7")
    nop(2)
    e("v_add_f32_dpp v10, v10, v10 quad_perm:[1,0,3,2] row_mask:0xf bank_mask:0xf")
    nop(2)
    e("v_add_f32_dpp v10, v10, v10 quad_perm:[2,3,0,1] row_mask:0xf bank_mask:0xf")
    e("v_rcp_f32 v10, v10")
    nop(1)
    e("v_mul_f32 v9, v9, v10")
    e("v_lshlrev_b32 v4, 2, v3")
    e(f"ds_write_b32 v4, v9 offset:{W}")
    e("s_waitcnt lgkmcnt(0)")
    e("s_barrier")
    e("v_lshlrev_b32 v4, 2, v1")
    for i in range(16): e(f"ds_read_b32 v{64+i}, v4 offset:{W+32*i}")
    e("s_waitcnt lgkmcnt(0)")
    e("s_waitcnt vmcnt(18)")
    e("v_mul_f32 v8, v16, v64")
    for i in range(1, 16): e(f"v_fmac_f32 v8, v{16+i}, v{64+i}")
    e("s_waitcnt vmcnt(4)")
    e("v_add_f32 v9, v32, v33")
    for i in range(2, 14): e(f"v_add_f32 v9, v9, v{32+i}")
    e("v_lshlrev_b32 v4, 2, v0")
    e(f"ds_write_b32 v4, v8 offset:{RA}")
    e(f"ds_write_b32 v4, v9 offset:{RB}")
    e("s_waitcnt vmcnt(0)")
    e("v_mov_b32 v10, 0")
    for j in range(5):
        e(f"v_lshlrev_b32 v11, 16, v{48+j}")
        e(f"v_lshlrev_b32 v12, 16, v{56+j}")
        e("v_mul_f32 v11, v11, v12")
        e(f"v_and_b32 v12, 0xffff0000, v{48+j}")
        e(f"v_and_b32 v13, 0xffff0000, v{56+j}")
        e("v_mul_f32 v12, v12, v13")
        e("v_cvt_pk_bf16_f32 v11, v11, v12")
        e("v_lshlrev_b32 v12, 16, v11")
        e("v_and_b32 v11, 0xffff0000, v11")
        e("v_add_f32 v10, v10, v12")
        e("v_add_f32 v10, v10, v11")
    for rr in (8, 4, 2, 1):
        nop(2)
        e(f"v_add_f32_dpp v10, v10, v10 row_ror:{rr} row_mask:0xf bank_mask:0xf")
    allreduce_g([10], [11])
    e("v_cvt_pk_bf16_f32 v10, v10, v10")
    e("v_lshlrev_b32 v10, 16, v10")
    e("v_mul_f32 v10, 0xbfb8aa3b, v10")
    e("v_exp_f32 v10, v10")
    nop(1)
    e("v_add_f32 v10, 1.0, v10")
    e("v_rcp_f32 v10, v10")
    nop(1)
    e("v_cvt_pk_bf16_f32 v10, v10, v10")
    e("v_lshlrev_b32 v10, 16, v10")
    e("v_sub_f32 v11, 1.0, v10")
    e("v_cvt_pk_bf16_f32 v11, v11, v11")
    e("v_lshlrev_b32 v11, 16, v11")
    e("s_waitcnt lgkmcnt(0)")
    e("s_barrier")
    e("v_lshlrev_b32 v4, 2, v2")
    for r in range(8):
        e(f"ds_read_b32 v{16+r}, v4 offset:{RA+128*r}")
        e(f"ds_read_b32 v{32+r}, v4 offset:{RB+128*r}")
    e("s_waitcnt lgkmcnt(0)")
    for r in range(1, 8):
        e(f"v_add_f32 v16, v16, v{16+r}")
        e(f"v_add_f32 v32, v32, v{32+r}")
    e("v_cvt_pk_bf16_f32 v16, v16, v32")
    e("v_lshlrev_b32 v17, 16, v16")
    e("v_and_b32 v18, 0xffff0000, v16")
    e("v_mul_f32 v17, v10, v17")
    e("v_mul_f32 v18, v11, v18")
    e("v_cvt_pk_bf16_f32 v16, v17, v18")
    e("v_lshlrev_b32 v17, 16, v16")
    e("v_and_b32 v18, 0xffff0000, v16")
    e("v_add_f32 v17, v17, v18")
    e("v_cvt_pk_bf16_f32 v17, v17, v17")
    e("v_cmp_gt_u32 vcc, 32, v0")
    e("s_and_saveexec_b64 s[8:9], vcc")
    e("s_cbranch_execz Lk2_end")
    e("v_lshlrev_b32 v4, 1, v2")
    e("s_lshl_b32 s6, s4, 6")
    e("v_add_u32 v4, s6, v4")
    e("v_add_u32 v4, s7, v4")
    e("buffer_store_short v17, v4, s[44:47], 0 offen")
    lab("Lk2_end")
    e("s_endpgm")

hdr = open(f"cdna_kernels/{NAME}.s.ref").read().split("; Override launch")[0]
o = [hdr.rstrip("\n")]
o.append(f"; @launch kernel={NAME}_k1_kernel grid=(256,1,1) block=(1024,1,1) lds={LDS1}")
o.append(f"; @launch kernel={NAME}_k2_kernel grid=(40,1,1) block=(256,1,1) lds=4096")
o.append('.amdgcn_target "amdgcn-amd-amdhsa--gfx950"')
o.append(".text")
for k in ("k1", "k2"):
    o.append(f".globl {NAME}_{k}_kernel")
    o.append(f".type {NAME}_{k}_kernel,@function")
o.append(".p2align 8")
k1()
out.append(".p2align 8")
k2()
o += out
o.append('.section .rodata,"a"')
for k, nv in (("k1", 128), ("k2", 96)):
    o.append(".p2align 6")
    o.append(f".amdhsa_kernel {NAME}_{k}_kernel")
    o.append(f"  .amdhsa_next_free_vgpr {nv}")
    o.append("  .amdhsa_next_free_sgpr 100")
    o.append(f"  .amdhsa_accum_offset {nv}")
    o.append("  .amdhsa_group_segment_fixed_size 0")
    o.append("  .amdhsa_kernarg_size 96")
    o.append("  .amdhsa_user_sgpr_count 2")
    o.append("  .amdhsa_user_sgpr_kernarg_segment_ptr 1")
    o.append("  .amdhsa_system_sgpr_workgroup_id_x 1")
    o.append(".end_amdhsa_kernel")
open(sys.argv[1], "w").write("\n".join(o) + "\n")
```

```python
import sys, re
NAME = "gated_mix__mha_block_cached__dense_activation_silu__decode"
OPT = sys.argv[2] if len(sys.argv) > 2 else "nt,D8"
NT = " nt" if 'nt' in OPT.split(',') else ""
DEPTH = int(re.search(r"D(\d+)", OPT).group(1))
STAMP = 'stamp' in OPT
m = re.search(r"P(\d+)", OPT); PREF = int(m.group(1)) if m else 0
out = []
def e(s): out.append("    " + s)
def lab(s): out.append(s + ":")
def nop(n): e(f"s_nop {n-1}")
LOG2E = 0x3fb8aa3b; SCALE = 0x3db504f3
Y_OFF, ML_OFF, Y2_OFF, QX, ST, OX = 0, 2 << 20, 3 << 20, 4 << 20, 8 << 20, 5 << 20
stamp_n = [0]
def stamp():
    if not STAMP: return
    k = stamp_n[0]; stamp_n[0] += 1
    e("s_memrealtime s[94:95]"); e("s_waitcnt lgkmcnt(0)"); e(f"v_writelane_b32 v126, s94, {k}")
class VM:
    def __init__(s, l=None): s.l = list(l or [])
    def issue(s, tag): s.l.append(tag)
    def wait(s, tag):
        n = len(s.l) - 1 - s.l.index(tag); e(f"s_waitcnt vmcnt({n})")
def allreduce_g(regs, tmp, op="v_add_f32"):
    for r, t in zip(regs, tmp): e(f"v_mov_b32 v{t}, v{r}")
    nop(2)
    for r, t in zip(regs, tmp): e(f"v_permlane16_swap_b32 v{r}, v{t}")
    for r, t in zip(regs, tmp): e(f"{op} v{r}, v{r}, v{t}")
    for r, t in zip(regs, tmp): e(f"v_mov_b32 v{t}, v{r}")
    nop(2)
    for r, t in zip(regs, tmp): e(f"v_permlane32_swap_b32 v{r}, v{t}")
    for r, t in zip(regs, tmp): e(f"{op} v{r}, v{r}, v{t}")
def srd(d, lo, hi, nrec):
    e(f"s_mov_b32 s{d}, s{lo}"); e(f"s_and_b32 s{d+1}, s{hi}, 0xffff"); e(f"s_mov_b32 s{d+2}, {nrec}"); e(f"s_mov_b32 s{d+3}, 0x00020000")
SX, SK, SV, SWQ, SWO, SW1, SW2, SWS = 36, 40, 44, 48, 52, 56, 60, 64

XS, SP, HS = 0, 8192, 12288
LDS0 = 12544
def slice_partial(vm, tag, regs, off):
    for a in (18, 19, 20, 21): e(f"v_mov_b32 v{a}, 0")
    vm.wait(f'{tag}4')
    for i in range(5):
        e(f"v_lshlrev_b32 v2, 16, v{regs[i]}"); e(f"v_and_b32 v3, 0xffff0000, v{regs[i]}")
        e(f"v_fmac_f32 v18, v{8+i}, v2"); e(f"v_fmac_f32 v19, v{8+i}, v3")
        e(f"v_fmac_f32 v20, v{13+i}, v2"); e(f"v_fmac_f32 v21, v{13+i}, v3")
    nop(2)
    for a in (18, 19, 20, 21): e(f"v_add_f32_dpp v{a}, v{a}, v{a} row_ror:8 row_mask:0xf bank_mask:0xf")
    allreduce_g([18, 19, 20, 21], [2, 3, 22, 23])
    e("v_and_b32 v2, 7, v0"); e("v_lshlrev_b32 v2, 3, v2"); e("v_add_u32 v2, s78, v2")
    e(f"ds_write_b64 v2, v[18:19] offset:{SP+off}"); e(f"ds_write_b64 v2, v[20:21] offset:{SP+off+64}")
def sum16(off):
    e("v_and_b32 v2, 31, v0"); e("v_lshlrev_b32 v2, 2, v2")
    for w in range(14): e(f"ds_read_b32 v{8+w}, v2 offset:{SP+off+256*w}")
    e("s_waitcnt lgkmcnt(0)")
    for w in range(1, 14): e(f"v_add_f32 v8, v8, v{8+w}")
    e(f"ds_read_b32 v9, v2 offset:{SP+off+256*14}"); e(f"ds_read_b32 v10, v2 offset:{SP+off+256*15}")
    e("s_waitcnt lgkmcnt(0)")
    e("v_add_f32 v8, v8, v9"); e("v_add_f32 v8, v8, v10")
def k0_body(ffn):
    F = int(ffn); vm = VM()
    WQ = [24 + i for i in range(5)]; W1 = [29 + i for i in range(5)]; W2 = [34 + i for i in range(16)]
    e("v_lshlrev_b32 v2, 1, v0")
    e(f"buffer_load_ushort v16, v2, s[{SX}:{SX+3}], 0 offen"); vm.issue('x0')
    e(f"buffer_load_ushort v17, v2, s[{SX}:{SX+3}], 0 offen offset:1280"); vm.issue('x1')
    e("v_lshrrev_b32 v10, 3, v0"); e("v_mul_u32_u24 v10, 5, v10"); e("v_and_b32 v11, 7, v0")
    e("v_lshlrev_b32 v12, 13, v10"); e("v_lshl_add_u32 v12, v11, 2, v12")
    for i in range(5):
        e(f"buffer_load_dword v{WQ[i]}, v12, s[{SWQ}:{SWQ+3}], s{80+i} offen"); vm.issue(f'wq{i}')
    if ffn:
        e("v_mov_b32 v12, 3456"); e("v_mul_u32_u24 v12, v10, v12"); e("v_lshl_add_u32 v12, v11, 2, v12"); e("v_add_u32 v12, s71, v12")
        for i in range(5):
            e(f"buffer_load_dword v{W1[i]}, v12, s[{SW1}:{SW1+3}], 0 offen"); vm.issue(f'w1{i}')
            if i < 4: e("v_add_u32 v12, 3456, v12")
        e("v_lshlrev_b32 v12, 2, v0"); e("v_add_u32 v12, s72, v12")
        for r in range(16):
            e(f"buffer_load_dword v{W2[r]}, v12, s[{SW2}:{SW2+3}], 0 offen"); vm.issue(f'w2{r}')
            if r < 15: e("v_add_u32 v12, 1280, v12")
    if PREF:
        e("v_bfe_u32 v8, v0, 4, 2"); e("v_and_b32 v9, 15, v0")
        e("v_lshlrev_b32 v1, 8, v8"); e("v_add_u32 v1, s73, v1"); e("v_lshl_add_u32 v1, v9, 4, v1")
        for i in range(PREF):
            so = ["0", "s74", "s75", "s76"][i // 4]
            e(f"buffer_load_dwordx4 v[{52+4*(i%4)}:{55+4*(i%4)}], v1, s[{SK}:{SK+3}], {so} offen offset:{(i%4)*1024}"); vm.issue(f'p{i}')
    vm.wait('x1')
    e("v_lshlrev_b32 v16, 16, v16"); e("v_lshlrev_b32 v17, 16, v17"); e("v_lshlrev_b32 v2, 2, v0")
    e(f"ds_write_b32 v2, v16 offset:{XS}"); e(f"ds_write_b32 v2, v17 offset:{XS+4096}")
    e("s_waitcnt lgkmcnt(0)"); e("s_barrier")
    e("v_lshrrev_b32 v2, 3, v0"); e("v_mul_u32_u24 v2, 20, v2")
    for i in range(5):
        e(f"ds_read_b32 v{8+i}, v2 offset:{XS+4*i}"); e(f"ds_read_b32 v{13+i}, v2 offset:{XS+4096+4*i}")
    e("s_waitcnt lgkmcnt(0)")
    slice_partial(vm, 'wq', WQ, 0)
    if ffn: slice_partial(vm, 'w1', W1, 128)
    e("s_waitcnt lgkmcnt(0)"); e("s_barrier")
    L = f"Lk0{F}"
    e("s_cmp_lg_u32 s69, 0"); e(f"s_cbranch_scc1 {L}_a")
    sum16(0)
    e("v_cvt_pk_bf16_f32 v8, v8, v8")
    e("v_and_b32 v3, 16, v0"); e("v_lshlrev_b32 v3, 4, v3"); e("v_and_b32 v2, 15, v0"); e("v_lshl_add_u32 v2, v2, 1, v3"); e("v_add_u32 v2, s90, v2")
    e(f"buffer_store_short v8, v2, s[{SWS}:{SWS+3}], 0 offen")
    e(f"s_branch {L}_b")
    lab(f"{L}_a")
    if ffn:
        e("s_cmp_lg_u32 s69, 2"); e(f"s_cbranch_scc1 {L}_b")
        sum16(128)
        e("v_cvt_pk_bf16_f32 v8, v8, v8"); e("v_lshlrev_b32 v8, 16, v8")
        e("v_mul_f32 v9, 0xbfb8aa3b, v8"); e("v_exp_f32 v9, v9"); nop(1)
        e("v_add_f32 v9, 1.0, v9"); e("v_rcp_f32 v9, v9"); nop(1)
        e("v_mul_f32 v8, v8, v9"); e("v_cvt_pk_bf16_f32 v8, v8, v8"); e("v_lshlrev_b32 v8, 16, v8")
        e(f"ds_write_b32 v2, v8 offset:{HS}")
    lab(f"{L}_b")
    if ffn:
        e("s_waitcnt lgkmcnt(0)"); e("s_barrier")
        e("s_cmp_ge_u32 s69, 5"); e("s_cbranch_scc1 Lk0_end")
        e("v_mov_b32 v2, 0")
        for r in range(4): e(f"ds_read_b128 v[{8+4*r}:{11+4*r}], v2 offset:{HS+16*r}")
        for a in (4, 5, 6, 7): e(f"v_mov_b32 v{a}, 0")
        e("s_waitcnt lgkmcnt(0)")
        vm.wait('w215')
        for r in range(16):
            e(f"v_lshlrev_b32 v2, 16, v{W2[r]}"); e(f"v_and_b32 v3, 0xffff0000, v{W2[r]}")
            e(f"v_fmac_f32 v4, v{8+r}, v2"); e(f"v_fmac_f32 v5, v{8+r}, v3")
        e("v_mov_b32 v2, 0")
        for r in range(4): e(f"ds_read_b128 v[{8+4*r}:{11+4*r}], v2 offset:{HS+64+16*r}")
        e("s_waitcnt lgkmcnt(0)")
        for r in range(16):
            e(f"v_lshlrev_b32 v2, 16, v{W2[r]}"); e(f"v_and_b32 v3, 0xffff0000, v{W2[r]}")
            e(f"v_fmac_f32 v6, v{8+r}, v2"); e(f"v_fmac_f32 v7, v{8+r}, v3")
        e("v_lshlrev_b32 v2, 3, v0"); e("v_add_u32 v2, s92, v2")
        e(f"buffer_store_dwordx2 v[4:5], v2, s[{SWS}:{SWS+3}], 0 offen")
        e(f"buffer_store_dwordx2 v[6:7], v2, s[{SWS}:{SWS+3}], 0 offen offset:2560")
    e("s_branch Lk0_end")
def common_prologue(end):
    e("s_cmp_ge_u32 s2, 256"); e(f"s_cbranch_scc1 {end}")
    e("s_load_dwordx16 s[16:31], s[0:1], 0"); e("s_load_dwordx2 s[32:33], s[0:1], 88")
    e("v_lshrrev_b32 v2, 6, v0"); nop(1); e("v_readfirstlane_b32 s69, v2")
    e("s_and_b32 s3, s2, 31"); e("s_lshr_b32 s4, s2, 5"); e("s_and_b32 s5, s4, 1"); e("s_lshr_b32 s6, s4, 1")
    e("s_lshl_b32 s73, s69, 14"); e("s_mov_b32 s74, 4096"); e("s_mov_b32 s75, 8192"); e("s_mov_b32 s76, 12288")
def kv_srds():
    e("s_lshl_b32 s7, s5, 5"); e("s_add_u32 s7, s7, s3"); e("s_lshl_b32 s7, s7, 20"); e("s_lshl_b32 s8, s6, 18"); e("s_add_u32 s7, s7, s8")
    e("s_add_u32 s10, s18, s7"); e("s_addc_u32 s11, s19, 0"); srd(SK, 10, 11, 262144)
    e("s_add_u32 s10, s20, s7"); e("s_addc_u32 s11, s21, 0"); srd(SV, 10, 11, 262144)
def k0():
    lab(f"{NAME}_k0_kernel")
    common_prologue("Lk0_end")
    e("s_lshl_b32 s71, s2, 5"); e("s_mul_i32 s72, s2, 20480"); e("s_lshl_b32 s78, s69, 8")
    for i in range(5): e(f"s_mov_b32 s{80+i}, {i*8192}")
    e("s_lshl_b32 s90, s3, 9"); e("s_lshl_b32 s7, s4, 5"); e("s_add_u32 s90, s90, s7"); e(f"s_add_u32 s90, s90, {QX}")
    e("s_mul_i32 s92, s2, 5120"); e(f"s_add_u32 s92, s92, {Y2_OFF}")
    e("s_waitcnt lgkmcnt(0)")
    srd(SX, 16, 17, 2560)
    if PREF: kv_srds()
    e("s_lshl_b32 s7, s3, 8"); e("s_lshl_b32 s8, s4, 5"); e("s_add_u32 s7, s7, s8")
    e("s_add_u32 s10, s22, s7"); e("s_addc_u32 s11, s23, 0"); e(f"s_sub_u32 s8, {640*8192}, s7"); srd(SWQ, 10, 11, "s8")
    srd(SW1, 28, 29, 640*3456); srd(SW2, 30, 31, 1728*1280); srd(SWS, 32, 33, 16 << 20)
    e("s_cmp_lt_u32 s2, 108"); e("s_cbranch_scc1 Lk0_ffn")
    k0_body(False); lab("Lk0_ffn"); k0_body(True); lab("Lk0_end"); e("s_endpgm")


MS, LP, OP = 0, 64, 128
LDS1 = 128 + 2048
def k1():
    lab(f"{NAME}_k1_kernel")
    e("s_cmp_ge_u32 s2, 1024"); e("s_cbranch_scc1 Lk1_end")
    e("s_load_dwordx4 s[16:19], s[0:1], 8"); e("s_load_dwordx2 s[32:33], s[0:1], 88")
    e("v_lshrrev_b32 v2, 6, v0"); nop(1); e("v_readfirstlane_b32 s69, v2")
    e("s_and_b32 s3, s2, 31"); e("s_lshr_b32 s4, s2, 5"); e("s_and_b32 s5, s4, 1"); e("s_lshr_b32 s6, s4, 1")
    e("s_lshl_b32 s73, s69, 14"); e("s_mov_b32 s74, 4096"); e("s_mov_b32 s75, 8192"); e("s_mov_b32 s76, 12288")
    e("s_lshl_b32 s78, s69, 9")
    e("s_lshl_b32 s90, s3, 1"); e("s_add_u32 s90, s90, s5"); e("s_lshl_b32 s90, s90, 8"); e(f"s_add_u32 s90, s90, {QX}")
    e("s_lshl_b32 s92, s2, 3"); e(f"s_add_u32 s92, s92, {ML_OFF}"); e("s_lshl_b32 s93, s2, 9"); e(f"s_add_u32 s93, s93, {OX}")
    e("s_lshl_b32 s7, s5, 5"); e("s_add_u32 s7, s7, s3"); e("s_lshl_b32 s7, s7, 20"); e("s_lshl_b32 s8, s6, 16"); e("s_add_u32 s7, s7, s8")
    e("s_waitcnt lgkmcnt(0)")
    e("s_add_u32 s10, s16, s7"); e("s_addc_u32 s11, s17, 0"); srd(SK, 10, 11, 65536)
    e("s_add_u32 s10, s18, s7"); e("s_addc_u32 s11, s19, 0"); srd(SV, 10, 11, 65536)
    srd(SWS, 32, 33, 16 << 20)
    vm = VM(); stamp_n[0] = 0; stamp()
    D = DEPTH
    WIN = [24 + 4*i for i in range(D)]
    KR = [WIN[i % D] for i in range(16)]; VR = [WIN[(16 + i) % D] for i in range(16)]
    base = 24 + 4 * D
    S = [base + i for i in range(16)]; ACC = [base + 16 + i for i in range(8)]; Q = [4, 5, 6, 7]
    global K1V; K1V = base + 24
    e("v_bfe_u32 v8, v0, 4, 2"); e("v_and_b32 v9, 15, v0")
    e("v_lshlrev_b32 v2, 4, v9"); e("v_add_u32 v2, s90, v2")
    e(f"buffer_load_dwordx4 v[4:7], v2, s[{SWS}:{SWS+3}], 0 offen"); vm.issue('q')
    e("v_lshlrev_b32 v1, 8, v8"); e("v_add_u32 v1, s73, v1"); e("v_lshl_add_u32 v1, v9, 4, v1")
    def kv_load(reg, srdb, i, tag):
        so = ["0", "s74", "s75", "s76"][i // 4]
        e(f"buffer_load_dwordx4 v[{reg}:{reg+3}], v1, s[{srdb}:{srdb+3}], {so} offen offset:{(i%4)*1024}{NT}"); vm.issue(tag)
    def stream(n):
        if n < 16: kv_load(KR[n], SK, n, f'k{n}')
        elif n < 32: kv_load(VR[n-16], SV, n-16, f'v{n-16}')
    for i in range(D): stream(i)
    for i in range(16):
        vm.wait(f'k{i}')
        for j in range(4):
            src2 = "0" if j == 0 else f"v{S[i]}"
            e(f"v_dot2_f32_bf16 v{S[i]}, v{KR[i]+j}, v{Q[j]}, {src2}")
        stream(i + D)
    nop(3)
    for rr in (8, 4, 2, 1):
        for i in range(16): e(f"v_add_f32_dpp v{S[i]}, v{S[i]}, v{S[i]} row_ror:{rr} row_mask:0xf bank_mask:0xf")
    stamp()
    for rep in range(2):
        for i in range(0, 16, 2):
            e(f"v_cvt_pk_bf16_f32 v2, v{S[i]}, v{S[i+1]}"); e(f"v_lshlrev_b32 v{S[i]}, 16, v2"); e(f"v_and_b32 v{S[i+1]}, 0xffff0000, v2")
        if rep == 0:
            for i in range(16): e(f"v_mul_f32 v{S[i]}, {SCALE:#x}, v{S[i]}")
    e(f"v_max3_f32 v16, v{S[0]}, v{S[1]}, v{S[2]}")
    for i in range(3, 15, 2): e(f"v_max3_f32 v16, v16, v{S[i]}, v{S[i+1]}")
    e(f"v_max_f32 v16, v16, v{S[15]}")
    e("v_mul_f32 v17, 0xbfb8aa3b, v16"); e(f"s_mov_b32 s91, {LOG2E:#x}")
    for i in range(16): e(f"v_fma_f32 v{S[i]}, v{S[i]}, s91, v17")
    for i in range(16): e(f"v_exp_f32 v{S[i]}, v{S[i]}")
    nop(1)
    e(f"v_add_f32 v18, v{S[0]}, v{S[1]}")
    for i in range(2, 16): e(f"v_add_f32 v18, v18, v{S[i]}")
    for a in ACC: e(f"v_mov_b32 v{a}, 0")
    for i in range(16):
        vm.wait(f'v{i}')
        for j in range(4):
            w = VR[i] + j
            e(f"v_lshlrev_b32 v19, 16, v{w}"); e(f"v_and_b32 v20, 0xffff0000, v{w}")
            e(f"v_fmac_f32 v{ACC[2*j]}, v{S[i]}, v19"); e(f"v_fmac_f32 v{ACC[2*j+1]}, v{S[i]}, v20")
        stream(16 + i + D)
    stamp()
    e("v_mov_b32 v17, v16")
    allreduce_g([17], [19], op="v_max_f32")
    e("v_mov_b32 v2, s69"); e("v_lshlrev_b32 v2, 2, v2"); e(f"ds_write_b32 v2, v17 offset:{MS}")
    e("s_waitcnt lgkmcnt(0)"); e("s_barrier")
    e("v_mov_b32 v2, 0"); e(f"ds_read_b128 v[{S[0]}:{S[3]}], v2 offset:{MS}")
    e("s_waitcnt lgkmcnt(0)")
    e(f"v_max3_f32 v17, v{S[0]}, v{S[1]}, v{S[2]}"); e(f"v_max_f32 v17, v17, v{S[3]}")
    e("v_sub_f32 v19, v16, v17"); e(f"v_mul_f32 v19, {LOG2E:#x}, v19"); e("v_exp_f32 v19, v19"); nop(1)
    for a in ACC + [18]: e(f"v_mul_f32 v{a}, v{a}, v19")
    allreduce_g(ACC + [18], S[:9])
    e("v_and_b32 v2, 15, v0"); e("v_lshlrev_b32 v2, 5, v2"); e("v_add_u32 v2, s78, v2")
    e(f"ds_write_b128 v2, v[{ACC[0]}:{ACC[3]}] offset:{OP}"); e(f"ds_write_b128 v2, v[{ACC[4]}:{ACC[7]}] offset:{OP+16}")
    e("v_mov_b32 v2, s69"); e("v_lshlrev_b32 v2, 2, v2"); e(f"ds_write_b32 v2, v18 offset:{LP}")
    e("s_waitcnt lgkmcnt(0)"); e("s_barrier")
    stamp()
    if STAMP:
        e("s_lshl_b32 s94, s2, 2"); e("s_add_u32 s94, s94, s69"); e("s_lshl_b32 s94, s94, 8"); e(f"s_add_u32 s94, s94, {ST}")
        e("v_and_b32 v2, 63, v0"); e("v_lshlrev_b32 v2, 2, v2"); e("v_add_u32 v2, s94, v2")
        e(f"buffer_store_dword v126, v2, s[{SWS}:{SWS+3}], 0 offen")
    e("s_cmp_ge_u32 s69, 2"); e("s_cbranch_scc1 Lo_a")
    e("v_lshlrev_b32 v2, 2, v0")
    for w in range(4): e(f"ds_read_b32 v{S[w]}, v2 offset:{OP+512*w}")
    e("s_waitcnt lgkmcnt(0)")
    for w in range(1, 4): e(f"v_add_f32 v{S[0]}, v{S[0]}, v{S[w]}")
    e("v_add_u32 v2, s93, v2")
    e(f"buffer_store_dword v{S[0]}, v2, s[{SWS}:{SWS+3}], 0 offen")
    e("s_branch Lk1_end")
    lab("Lo_a")
    e("s_cmp_lg_u32 s69, 3"); e("s_cbranch_scc1 Lk1_end")
    e("v_mov_b32 v2, 0"); e(f"ds_read_b128 v[{S[0]}:{S[3]}], v2 offset:{LP}")
    e("s_waitcnt lgkmcnt(0)")
    for w in range(1, 4): e(f"v_add_f32 v{S[0]}, v{S[0]}, v{S[w]}")
    e(f"v_mov_b32 v{S[1]}, v{S[0]}"); e(f"v_mov_b32 v{S[0]}, v17"); e("v_mov_b32 v2, s92")
    e(f"buffer_store_dwordx2 v[{S[0]}:{S[1]}], v2, s[{SWS}:{SWS+3}], 0 offen")
    lab("Lk1_end"); e("s_endpgm")

def k2():
    ON = 0
    lab(f"{NAME}_k2_kernel")
    e("s_cmp_ge_u32 s2, 256"); e("s_cbranch_scc1 Lk2_end")
    e("s_load_dwordx2 s[24:25], s[0:1], 32"); e("s_load_dwordx2 s[32:33], s[0:1], 88")
    e("v_lshrrev_b32 v2, 6, v0"); nop(1); e("v_readfirstlane_b32 s69, v2")
    e("s_and_b32 s3, s2, 31"); e("s_lshr_b32 s4, s2, 5")
    e("s_lshl_b32 s88, s4, 6"); e(f"s_add_u32 s88, s88, {OX}")
    e("s_mul_i32 s89, s2, 5120"); e(f"s_add_u32 s89, s89, {Y_OFF}")
    e("s_mul_i32 s7, s3, 163840"); e("s_mul_i32 s8, s4, 20480"); e("s_add_u32 s7, s7, s8")
    e("s_waitcnt lgkmcnt(0)")
    e("s_add_u32 s10, s24, s7"); e("s_addc_u32 s11, s25, 0"); srd(SWO, 10, 11, 20480)
    srd(SWS, 32, 33, 16 << 20)
    vm = VM()
    WO = [40 + i for i in range(16)]
    e("s_cmp_lg_u32 s69, 0"); e("s_cbranch_scc1 Lk2_w")
    e("v_bfe_u32 v8, v0, 4, 1"); e("v_and_b32 v9, 15, v0"); e("v_bfe_u32 v10, v0, 5, 1")
    e("v_lshlrev_b32 v11, 5, v8"); e("v_add_u32 v11, s3, v11"); e("v_lshl_add_u32 v11, v10, 9, v11")
    e("v_lshlrev_b32 v12, 9, v11"); e("v_lshl_add_u32 v12, v9, 2, v12"); e("v_add_u32 v12, s88, v12")
    e("v_lshlrev_b32 v13, 3, v11"); e(f"v_add_u32 v13, {ML_OFF}, v13")
    for c in range(8):
        e(f"buffer_load_dword v{56+c}, v12, s[{SWS}:{SWS+3}], 0 offen")
        e(f"buffer_load_dwordx2 v[{64+2*c}:{65+2*c}], v13, s[{SWS}:{SWS+3}], 0 offen")
        if c < 7: e("v_add_u32 v12, 32768, v12"); e("v_add_u32 v13, 512, v13")
    lab("Lk2_w")
    e("v_lshlrev_b32 v21, 2, v0")
    for r in range(16):
        e(f"buffer_load_dword v{WO[r]}, v21, s[{SWO}:{SWO+3}], 0 offen"); vm.issue(f'wo{r}')
        if r < 15: e("v_add_u32 v21, 1280, v21")
    e("s_cmp_lg_u32 s69, 0"); e("s_cbranch_scc1 Lk2_w2")
    e("s_waitcnt vmcnt(16)")
    e("v_max3_f32 v14, v64, v66, v68"); e("v_max3_f32 v14, v14, v70, v72"); e("v_max3_f32 v14, v14, v74, v76"); e("v_max_f32 v14, v14, v78")
    e("v_mov_b32 v15, v14"); nop(2); e("v_permlane32_swap_b32 v14, v15"); e("v_max_f32 v14, v14, v15")
    e("v_mov_b32 v15, 0"); e("v_mov_b32 v16, 0")
    for c in range(8):
        e(f"v_sub_f32 v17, v{64+2*c}, v14"); e(f"v_mul_f32 v17, {LOG2E:#x}, v17"); e("v_exp_f32 v17, v17"); nop(1)
        e(f"v_fmac_f32 v15, v17, v{65+2*c}"); e(f"v_fmac_f32 v16, v17, v{56+c}")
    e("v_mov_b32 v17, v15"); e("v_mov_b32 v18, v16"); nop(2)
    e("v_permlane32_swap_b32 v15, v17"); e("v_permlane32_swap_b32 v16, v18")
    e("v_add_f32 v15, v15, v17"); e("v_add_f32 v16, v16, v18")
    e("v_rcp_f32 v15, v15"); nop(1)
    e("v_mul_f32 v16, v16, v15"); e("v_cvt_pk_bf16_f32 v16, v16, v16"); e("v_lshlrev_b32 v16, 16, v16")
    e("v_and_b32 v2, 31, v0"); e("v_lshlrev_b32 v2, 2, v2"); e(f"ds_write_b32 v2, v16 offset:{ON}")
    e("s_waitcnt lgkmcnt(0)")
    lab("Lk2_w2")
    e("s_barrier")
    e("v_mov_b32 v2, 0")
    for r in range(4): e(f"ds_read_b128 v[{8+4*r}:{11+4*r}], v2 offset:{ON+16*r}")
    for a in (4, 5, 6, 7): e(f"v_mov_b32 v{a}, 0")
    e("s_waitcnt lgkmcnt(0)"); e("s_waitcnt vmcnt(0)")
    for r in range(16):
        e(f"v_lshlrev_b32 v2, 16, v{WO[r]}"); e(f"v_and_b32 v3, 0xffff0000, v{WO[r]}")
        e(f"v_fmac_f32 v4, v{8+r}, v2"); e(f"v_fmac_f32 v5, v{8+r}, v3")
    e("v_mov_b32 v2, 0")
    for r in range(4): e(f"ds_read_b128 v[{8+4*r}:{11+4*r}], v2 offset:{ON+64+16*r}")
    e("s_waitcnt lgkmcnt(0)")
    for r in range(16):
        e(f"v_lshlrev_b32 v2, 16, v{WO[r]}"); e(f"v_and_b32 v3, 0xffff0000, v{WO[r]}")
        e(f"v_fmac_f32 v6, v{8+r}, v2"); e(f"v_fmac_f32 v7, v{8+r}, v3")
    e("v_lshlrev_b32 v2, 3, v0"); e("v_add_u32 v2, s89, v2")
    e(f"buffer_store_dwordx2 v[4:5], v2, s[{SWS}:{SWS+3}], 0 offen")
    e(f"buffer_store_dwordx2 v[6:7], v2, s[{SWS}:{SWS+3}], 0 offen offset:2560")
    lab("Lk2_end"); e("s_endpgm")
def k3():
    RA, RB = 0, 1024
    lab(f"{NAME}_k3_kernel")
    e("s_cmp_ge_u32 s2, 80"); e("s_cbranch_scc1 Lk3_end")
    e("s_load_dwordx2 s[16:17], s[0:1], 0"); e("s_load_dwordx2 s[18:19], s[0:1], 64")
    e("s_load_dwordx2 s[20:21], s[0:1], 72"); e("s_load_dwordx2 s[22:23], s[0:1], 88")
    e("s_cmp_ge_u32 s2, 40"); e("s_cselect_b32 s3, 1, 0"); e("s_mul_i32 s4, s3, 40"); e("s_sub_u32 s4, s2, s4")
    e("v_lshrrev_b32 v1, 4, v0"); e("v_and_b32 v2, 15, v0")
    e("v_lshlrev_b32 v4, 1, v1"); e("v_add_u32 v4, s3, v4"); e("v_mov_b32 v5, 2560"); e("v_mul_u32_u24 v4, v4, v5")
    e("s_lshl_b32 s6, s4, 6"); e("v_lshl_add_u32 v4, v2, 2, v4"); e("v_add_u32 v4, s6, v4")
    e("v_mov_b32 v6, v4")
    e("s_waitcnt lgkmcnt(0)")
    srd(36, 16, 17, 2560); srd(40, 18, 19, 1280); srd(44, 20, 21, 2560)
    e(f"s_add_u32 s24, s22, {Y_OFF}"); e("s_addc_u32 s25, s23, 0"); srd(48, 24, 25, 256*5120)
    e(f"s_add_u32 s24, s22, {Y2_OFF}"); e("s_addc_u32 s25, s23, 0"); srd(52, 24, 25, 108*5120)
    for i in range(16):
        e(f"buffer_load_dword v{16+i}, v4, s[48:51], 0 offen")
        if i < 15: e("v_add_u32 v4, 81920, v4")
    for i in range(7):
        e(f"buffer_load_dword v{32+i}, v6, s[52:55], 0 offen")
        if i < 6: e("v_add_u32 v6, 81920, v6")
    e("v_and_b32 v4, 63, v0"); e("v_mul_u32_u24 v4, 20, v4"); e("s_mul_i32 s7, s3, 1280"); e("v_add_u32 v5, s7, v4")
    e("buffer_load_dwordx4 v[48:51], v5, s[36:39], 0 offen"); e("buffer_load_dword v52, v5, s[36:39], 0 offen offset:16")
    e("buffer_load_dwordx4 v[56:59], v4, s[40:43], 0 offen"); e("buffer_load_dword v60, v4, s[40:43], 0 offen offset:16")
    e("s_waitcnt vmcnt(11)")
    e("v_add_f32 v8, v16, v17")
    for i in range(2, 16): e(f"v_add_f32 v8, v8, v{16+i}")
    e("s_waitcnt vmcnt(4)")
    e("v_add_f32 v9, v32, v33")
    for i in range(2, 7): e(f"v_add_f32 v9, v9, v{32+i}")
    e("v_lshlrev_b32 v4, 2, v0")
    e(f"ds_write_b32 v4, v8 offset:{RA}"); e(f"ds_write_b32 v4, v9 offset:{RB}")
    e("s_waitcnt vmcnt(0)")
    e("v_mov_b32 v10, 0")
    for j in range(5):
        e(f"v_lshlrev_b32 v11, 16, v{48+j}"); e(f"v_lshlrev_b32 v12, 16, v{56+j}"); e("v_mul_f32 v11, v11, v12")
        e(f"v_and_b32 v12, 0xffff0000, v{48+j}"); e(f"v_and_b32 v13, 0xffff0000, v{56+j}"); e("v_mul_f32 v12, v12, v13")
        e("v_cvt_pk_bf16_f32 v11, v11, v12"); e("v_lshlrev_b32 v12, 16, v11"); e("v_and_b32 v11, 0xffff0000, v11")
        e("v_add_f32 v10, v10, v12"); e("v_add_f32 v10, v10, v11")
    for rr in (8, 4, 2, 1):
        nop(2); e(f"v_add_f32_dpp v10, v10, v10 row_ror:{rr} row_mask:0xf bank_mask:0xf")
    allreduce_g([10], [11])
    e("v_cvt_pk_bf16_f32 v10, v10, v10"); e("v_lshlrev_b32 v10, 16, v10")
    e("v_mul_f32 v10, 0xbfb8aa3b, v10"); e("v_exp_f32 v10, v10"); nop(1)
    e("v_add_f32 v10, 1.0, v10"); e("v_rcp_f32 v10, v10"); nop(1)
    e("v_cvt_pk_bf16_f32 v10, v10, v10"); e("v_lshlrev_b32 v10, 16, v10")
    e("v_sub_f32 v11, 1.0, v10"); e("v_cvt_pk_bf16_f32 v11, v11, v11"); e("v_lshlrev_b32 v11, 16, v11")
    e("s_waitcnt lgkmcnt(0)")
    e("s_barrier")
    e("v_lshlrev_b32 v4, 2, v2")
    for r in range(16):
        e(f"ds_read_b32 v{16+r}, v4 offset:{RA+64*r}"); e(f"ds_read_b32 v{32+r}, v4 offset:{RB+64*r}")
    e("s_waitcnt lgkmcnt(0)")
    for r in range(1, 16):
        e(f"v_add_f32 v16, v16, v{16+r}"); e(f"v_add_f32 v32, v32, v{32+r}")
    e("v_cvt_pk_bf16_f32 v16, v16, v32"); e("v_lshlrev_b32 v17, 16, v16"); e("v_and_b32 v18, 0xffff0000, v16")
    e("v_mul_f32 v17, v10, v17"); e("v_mul_f32 v18, v11, v18")
    e("v_cvt_pk_bf16_f32 v16, v17, v18"); e("v_lshlrev_b32 v17, 16, v16"); e("v_and_b32 v18, 0xffff0000, v16")
    e("v_add_f32 v17, v17, v18"); e("v_cvt_pk_bf16_f32 v17, v17, v17")
    e("v_cmp_gt_u32 vcc, 16, v0"); e("s_and_saveexec_b64 s[8:9], vcc"); e("s_cbranch_execz Lk3_end")
    e("v_lshlrev_b32 v4, 1, v2"); e("s_lshl_b32 s6, s4, 5"); e("v_add_u32 v4, s6, v4"); e("v_add_u32 v4, s7, v4")
    e("buffer_store_short v17, v4, s[44:47], 0 offen")
    lab("Lk3_end")
    e("s_endpgm")


hdr = open(f"cdna_kernels/{NAME}.s.ref").read().split("; Override launch")[0]
o = [hdr.rstrip("\n")]
o.append(f"; @launch kernel={NAME}_k0_kernel grid=(256,1,1) block=(1024,1,1) lds={LDS0}")
o.append(f"; @launch kernel={NAME}_k1_kernel grid=(1024,1,1) block=(256,1,1) lds={LDS1}")
o.append(f"; @launch kernel={NAME}_k2_kernel grid=(256,1,1) block=(320,1,1) lds=256")
o.append(f"; @launch kernel={NAME}_k3_kernel grid=(80,1,1) block=(256,1,1) lds=4096")
o.append('.amdgcn_target "amdgcn-amd-amdhsa--gfx950"'); o.append(".text")
for k in ("k0", "k1", "k2", "k3"):
    o.append(f".globl {NAME}_{k}_kernel"); o.append(f".type {NAME}_{k}_kernel,@function")
o.append(".p2align 8"); k0(); out.append(".p2align 8"); k1(); out.append(".p2align 8"); k2(); out.append(".p2align 8"); k3()
o += out
o.append('.section .rodata,"a"')
k1v = 128 if STAMP else (K1V + 3) // 4 * 4
for k, nv in (("k0", 72), ("k1", k1v), ("k2", 80), ("k3", 96)):
    o.append(".p2align 6"); o.append(f".amdhsa_kernel {NAME}_{k}_kernel")
    o.append(f"  .amdhsa_next_free_vgpr {nv}"); o.append("  .amdhsa_next_free_sgpr 100"); o.append(f"  .amdhsa_accum_offset {nv}")
    o.append("  .amdhsa_group_segment_fixed_size 0"); o.append("  .amdhsa_kernarg_size 96"); o.append("  .amdhsa_user_sgpr_count 2")
    o.append("  .amdhsa_user_sgpr_kernarg_segment_ptr 1"); o.append("  .amdhsa_system_sgpr_workgroup_id_x 1"); o.append(".end_amdhsa_kernel")
open(sys.argv[1], "w").write("\n".join(o) + "\n")
```

```python
import sys
NAME = "gated_mix__mha_block_cached__dense_activation_silu__decode"
OPT = sys.argv[2] if len(sys.argv) > 2 else "nt,D8"
NT = " nt" if 'nt' in OPT else ""
import re as _re
DEPTH = int(_re.search(r"D(\d+)", OPT).group(1))
out = []
def e(s): out.append("    " + s)
def lab(s): out.append(s + ":")
def nop(n): e(f"s_nop {n-1}")

XS, QP, QB, HP, HS, MS, LP, OS, OP, YP = 0, 8192, 16384, 16640, 18688, 18816, 19072, 19200, 20480, 28672
LDS1 = 28672 + 13 * 2560
Y_OFF, ML_OFF, Y2_OFF = 0, 1 << 20, 2 << 20
LOG2E = 0x3fb8aa3b
SCALE = 0x3db504f3

STAMP = 'stamp' in OPT
stamp_n = [0]
def stamp():
    if not STAMP: return
    k = stamp_n[0]; stamp_n[0] += 1
    e(f"s_memrealtime s[{94}:{95}]")
    e("s_waitcnt lgkmcnt(0)")
    e(f"v_writelane_b32 v126, s94, {k}")
class VM:
    def __init__(s): s.l = []
    def issue(s, tag): s.l.append(tag)
    def wait(s, tag):
        n = len(s.l) - 1 - s.l.index(tag)
        e(f"s_waitcnt vmcnt({n})")

def allreduce_g(regs, tmp, op="v_add_f32"):
    for r, t in zip(regs, tmp): e(f"v_mov_b32 v{t}, v{r}")
    nop(2)
    for r, t in zip(regs, tmp): e(f"v_permlane16_swap_b32 v{r}, v{t}")
    for r, t in zip(regs, tmp): e(f"{op} v{r}, v{r}, v{t}")
    for r, t in zip(regs, tmp): e(f"v_mov_b32 v{t}, v{r}")
    nop(2)
    for r, t in zip(regs, tmp): e(f"v_permlane32_swap_b32 v{r}, v{t}")
    for r, t in zip(regs, tmp): e(f"{op} v{r}, v{r}, v{t}")

def srd(d, lo, hi, nrec):
    e(f"s_mov_b32 s{d}, s{lo}")
    e(f"s_and_b32 s{d+1}, s{hi}, 0xffff")
    e(f"s_mov_b32 s{d+2}, {nrec}")
    e(f"s_mov_b32 s{d+3}, 0x00020000")

SX, SK, SV, SWQ, SWO, SW1, SW2, SWS = 36, 40, 44, 48, 52, 56, 60, 64

def k1_body(ffn):
    vm = VM()
    stamp_n[0] = 0
    stamp()
    D = DEPTH
    D = 16
    WIN = [24 + 4*i for i in range(16)]
    WQ = [88 + 4*i for i in range(10)]
    KR = [WIN[i] for i in range(16)]
    VR = [WIN[i] for i in range(16)]
    WO = [WIN[i] for i in range(11)]
    S = [88 + i for i in range(16)]
    ACC = [104 + i for i in range(8)]
    W1 = [64 + i for i in range(5)]
    W2 = [69 + i for i in range(16)]
    K0N = 10
    Q = [4, 5, 6, 7]
    e("v_lshlrev_b32 v2, 1, v0")
    e(f"buffer_load_ushort v16, v2, s[{SX}:{SX+3}], 0 offen"); vm.issue('x0')
    e(f"buffer_load_ushort v17, v2, s[{SX}:{SX+3}], 0 offen offset:1280"); vm.issue('x1')
    e("v_bfe_u32 v8, v0, 4, 2")
    e("v_and_b32 v9, 15, v0")
    e("v_mul_u32_u24 v3, 10, v8")
    e("v_add_u32 v3, s70, v3")
    e("v_lshlrev_b32 v3, 13, v3")
    e("v_lshl_add_u32 v3, v9, 4, v3")
    for i in range(10):
        e(f"buffer_load_dwordx4 v[{WQ[i]}:{WQ[i]+3}], v3, s[{SWQ}:{SWQ+3}], s{80+i} offen"); vm.issue(f'wq{i}')
    if ffn:
        e("v_lshrrev_b32 v10, 3, v0")
        e("v_mul_u32_u24 v10, 5, v10")
        e("v_mov_b32 v11, 3456")
        e("v_mul_u32_u24 v10, v10, v11")
        e("v_and_b32 v11, 7, v0")
        e("v_lshl_add_u32 v10, v11, 2, v10")
        e("v_add_u32 v10, s71, v10")
        for i in range(5):
            e(f"buffer_load_dword v{W1[i]}, v10, s[{SW1}:{SW1+3}], 0 offen"); vm.issue(f'w1{i}')
            if i < 4: e("v_add_u32 v10, 3456, v10")
        e("v_lshlrev_b32 v10, 2, v0")
        e("v_add_u32 v10, s72, v10")
        for r in range(16):
            e(f"buffer_load_dword v{W2[r]}, v10, s[{SW2}:{SW2+3}], 0 offen"); vm.issue(f'w2{r}')
            if r < 15: e("v_add_u32 v10, 1280, v10")
    stamp()
    e("s_barrier")
    stamp()
    e("v_lshlrev_b32 v1, 8, v8")
    e("v_add_u32 v1, s73, v1")
    e("v_lshl_add_u32 v1, v9, 4, v1")
    def kv_load(reg, srdb, i, tag):
        so = ["0", "s74", "s75", "s76"][i // 4]
        e(f"buffer_load_dwordx4 v[{reg}:{reg+3}], v1, s[{srdb}:{srdb+3}], {so} offen offset:{(i%4)*1024}{NT}"); vm.issue(tag)
    def stream(n):
        if n < 16: kv_load(KR[n], SK, n, f'k{n}')
        elif n < 32: kv_load(VR[n-16], SV, n-16, f'v{n-16}')
    for i in range(K0N): stream(i)
    vm.wait('x1')
    stamp()
    e("v_lshlrev_b32 v16, 16, v16")
    e("v_lshlrev_b32 v17, 16, v17")
    e("v_lshlrev_b32 v2, 2, v0")
    e(f"ds_write_b32 v2, v16 offset:{XS}")
    e(f"ds_write_b32 v2, v17 offset:{XS+4096}")
    e("s_waitcnt lgkmcnt(0)")
    e("s_barrier")
    stamp()
    e("v_mul_u32_u24 v2, 10, v8")
    e("v_add_u32 v2, s70, v2")
    e("v_lshlrev_b32 v2, 2, v2")
    e("v_add_u32 v2, s77, v2")
    QA = [8+i for i in range(8)]
    e("v_mov_b32 v22, v8")
    e("v_mov_b32 v23, v9")
    for a in QA: e(f"v_mov_b32 v{a}, 0")
    for half in range(2):
        for k in range(3):
            pass
        e(f"ds_read_b64 v[16:17], v2 offset:{XS+half*20}")
        e(f"ds_read_b64 v[18:19], v2 offset:{XS+half*20+8}")
        e(f"ds_read_b32 v20, v2 offset:{XS+half*20+16}")
        e("s_waitcnt lgkmcnt(0)")
        for ii in range(5):
            i = half*5 + ii
            vm.wait(f'wq{i}')
            if i in (0, 9): stamp()
            for j in range(4):
                w = WQ[i] + j
                e(f"v_lshlrev_b32 v21, 16, v{w}")
                e(f"v_and_b32 v3, 0xffff0000, v{w}")
                e(f"v_fmac_f32 v{QA[2*j]}, v{16+ii}, v21")
                e(f"v_fmac_f32 v{QA[2*j+1]}, v{16+ii}, v3")
    allreduce_g(QA, [16+i for i in range(6)] + [2, 3])
    e("v_lshlrev_b32 v2, 5, v23")
    e("v_add_u32 v2, s78, v2")
    e(f"ds_write_b128 v2, v[8:11] offset:{QP}")
    e(f"ds_write_b128 v2, v[12:15] offset:{QP+16}")
    if ffn:
        e("v_lshrrev_b32 v2, 3, v0")
        e("v_mul_u32_u24 v2, 20, v2")
        for i in range(5):
            e(f"ds_read_b32 v{8+i}, v2 offset:{XS+4*i}")
            e(f"ds_read_b32 v{13+i}, v2 offset:{XS+4096+4*i}")
        for a in (18, 19, 20, 21): e(f"v_mov_b32 v{a}, 0")
        e("s_waitcnt lgkmcnt(0)")
        vm.wait('w14')
        for i in range(5):
            e(f"v_lshlrev_b32 v2, 16, v{W1[i]}")
            e(f"v_and_b32 v3, 0xffff0000, v{W1[i]}")
            e(f"v_fmac_f32 v18, v{8+i}, v2")
            e(f"v_fmac_f32 v19, v{8+i}, v3")
            e(f"v_fmac_f32 v20, v{13+i}, v2")
            e(f"v_fmac_f32 v21, v{13+i}, v3")
        nop(2)
        for a in (18, 19, 20, 21):
            e(f"v_add_f32_dpp v{a}, v{a}, v{a} row_ror:8 row_mask:0xf bank_mask:0xf")
        allreduce_g([18, 19, 20, 21], [8, 9, 10, 11])
        e("v_and_b32 v2, 7, v0")
        e("v_lshlrev_b32 v2, 3, v2")
        e("v_add_u32 v2, s79, v2")
        e(f"ds_write_b64 v2, v[18:19] offset:{HP}")
        e(f"ds_write_b64 v2, v[20:21] offset:{HP+64}")
    e("s_waitcnt lgkmcnt(0)")
    e("s_barrier")
    stamp()
    L = f"Lq{int(ffn)}"
    e("s_cmp_ge_u32 s69, 2")
    e(f"s_cbranch_scc1 {L}_a")
    e("v_lshlrev_b32 v2, 2, v0")
    for w in range(16):
        e(f"ds_read_b32 v{8+w}, v2 offset:{QP+512*w}") if w < 14 else None
    e("s_waitcnt lgkmcnt(0)")
    for w in range(1, 14): e(f"v_add_f32 v8, v8, v{8+w}")
    e(f"ds_read_b32 v9, v2 offset:{QP+512*14}")
    e(f"ds_read_b32 v10, v2 offset:{QP+512*15}")
    e("s_waitcnt lgkmcnt(0)")
    e("v_add_f32 v8, v8, v9")
    e("v_add_f32 v8, v8, v10")
    e("v_cvt_pk_bf16_f32 v8, v8, v8")
    e("v_lshlrev_b32 v2, 1, v0")
    e(f"ds_write_b16 v2, v8 offset:{QB}")
    e(f"s_branch {L}_b")
    lab(f"{L}_a")
    if ffn:
        e("s_cmp_lg_u32 s69, 2")
        e(f"s_cbranch_scc1 {L}_b")
        e("v_and_b32 v2, 31, v0")
        e("v_lshlrev_b32 v2, 2, v2")
        for w in range(14): e(f"ds_read_b32 v{8+w}, v2 offset:{HP+128*w}")
        e("s_waitcnt lgkmcnt(0)")
        for w in range(1, 14): e(f"v_add_f32 v8, v8, v{8+w}")
        e(f"ds_read_b32 v9, v2 offset:{HP+128*14}")
        e(f"ds_read_b32 v10, v2 offset:{HP+128*15}")
        e("s_waitcnt lgkmcnt(0)")
        e("v_add_f32 v8, v8, v9")
        e("v_add_f32 v8, v8, v10")
        e("v_cvt_pk_bf16_f32 v8, v8, v8")
        e("v_lshlrev_b32 v8, 16, v8")
        e(f"v_mul_f32 v9, 0xbfb8aa3b, v8")
        e("v_exp_f32 v9, v9")
        nop(1)
        e("v_add_f32 v9, 1.0, v9")
        e("v_rcp_f32 v9, v9")
        nop(1)
        e("v_mul_f32 v8, v8, v9")
        e("v_cvt_pk_bf16_f32 v8, v8, v8")
        e("v_lshlrev_b32 v8, 16, v8")
        e(f"ds_write_b32 v2, v8 offset:{HS}")
    lab(f"{L}_b")
    e("s_waitcnt lgkmcnt(0)")
    e("s_barrier")
    stamp()
    e("v_lshlrev_b32 v2, 4, v23")
    e(f"ds_read_b128 v[4:7], v2 offset:{QB}")
    if ffn:
        e("v_mov_b32 v2, 0")
        for r in range(4):
            e(f"ds_read_b128 v[{8+4*r}:{11+4*r}], v2 offset:{HS+16*r}")
        e("s_waitcnt lgkmcnt(0)")
        vm.wait('w215')
        for a in (122, 123, 124, 125): e(f"v_mov_b32 v{a}, 0")
        for r in range(16):
            e(f"v_lshlrev_b32 v2, 16, v{W2[r]}")
            e(f"v_and_b32 v3, 0xffff0000, v{W2[r]}")
            e(f"v_fmac_f32 v122, v{8+r}, v2")
            e(f"v_fmac_f32 v123, v{8+r}, v3")
        e("v_mov_b32 v2, 0")
        for r in range(4):
            e(f"ds_read_b128 v[{8+4*r}:{11+4*r}], v2 offset:{HS+64+16*r}")
        e("s_waitcnt lgkmcnt(0)")
        for r in range(16):
            e(f"v_lshlrev_b32 v2, 16, v{W2[r]}")
            e(f"v_and_b32 v3, 0xffff0000, v{W2[r]}")
            e(f"v_fmac_f32 v124, v{8+r}, v2")
            e(f"v_fmac_f32 v125, v{8+r}, v3")
        e("s_cmp_ge_u32 s69, 5")
        e(f"s_cbranch_scc1 Ly2skip")
        e("v_lshlrev_b32 v2, 3, v0")
        e("v_add_u32 v2, s90, v2")
        e(f"buffer_store_dwordx2 v[122:123], v2, s[{SWS}:{SWS+3}], 0 offen")
        e(f"buffer_store_dwordx2 v[124:125], v2, s[{SWS}:{SWS+3}], 0 offen offset:2560")
        lab("Ly2skip")
        nop(2)
    e("s_waitcnt lgkmcnt(0)")
    for i in range(K0N, 16): stream(i)
    stamp()
    for i in range(16):
        vm.wait(f'k{i}')
        for j in range(4):
            src2 = "0" if j == 0 else f"v{S[i]}"
            e(f"v_dot2_f32_bf16 v{S[i]}, v{KR[i]+j}, v{Q[j]}, {src2}")
        stream(i + D)
    nop(3)
    for rr in (8, 4, 2, 1):
        for i in range(16): e(f"v_add_f32_dpp v{S[i]}, v{S[i]}, v{S[i]} row_ror:{rr} row_mask:0xf bank_mask:0xf")
    stamp()
    e("v_mov_b32 v3, 52429")
    e("v_mul_u32_u24 v2, v0, v3")
    e("v_lshrrev_b32 v22, 22, v2")
    e("v_mul_u32_u24 v3, 80, v22")
    e("v_sub_u32 v23, v0, v3")
    e("v_mov_b32 v3, 1280")
    e("v_mul_u32_u24 v21, v22, v3")
    e("v_lshl_add_u32 v21, v23, 4, v21")
    def wo_load(i):
        e(f"v_add_u32 v2, {i*15360}, v21")
        e(f"buffer_load_dwordx4 v[{WO[i]}:{WO[i]+3}], v2, s[{SWO}:{SWO+3}], 0 offen"); vm.issue(f'wo{i}')
    for rep in range(2):
        for i in range(0, 16, 2):
            e(f"v_cvt_pk_bf16_f32 v2, v{S[i]}, v{S[i+1]}")
            e(f"v_lshlrev_b32 v{S[i]}, 16, v2")
            e(f"v_and_b32 v{S[i+1]}, 0xffff0000, v2")
        if rep == 0:
            for i in range(16): e(f"v_mul_f32 v{S[i]}, {SCALE:#x}, v{S[i]}")
    e(f"v_max3_f32 v16, v{S[0]}, v{S[1]}, v{S[2]}")
    for i in range(3, 15, 2): e(f"v_max3_f32 v16, v16, v{S[i]}, v{S[i+1]}")
    e(f"v_max_f32 v16, v16, v{S[15]}")
    e(f"v_mul_f32 v17, 0xbfb8aa3b, v16")
    e(f"s_mov_b32 s91, {LOG2E:#x}")
    for i in range(16): e(f"v_fma_f32 v{S[i]}, v{S[i]}, s91, v17")
    for i in range(16): e(f"v_exp_f32 v{S[i]}, v{S[i]}")
    nop(1)
    e(f"v_add_f32 v18, v{S[0]}, v{S[1]}")
    for i in range(2, 16): e(f"v_add_f32 v18, v18, v{S[i]}")
    for a in ACC: e(f"v_mov_b32 v{a}, 0")
    for i in range(16):
        vm.wait(f'v{i}')
        for j in range(4):
            w = VR[i] + j
            e(f"v_lshlrev_b32 v19, 16, v{w}")
            e(f"v_and_b32 v20, 0xffff0000, v{w}")
            e(f"v_fmac_f32 v{ACC[2*j]}, v{S[i]}, v19")
            e(f"v_fmac_f32 v{ACC[2*j+1]}, v{S[i]}, v20")
        stream(16 + i + D)
        if i < 11: wo_load(i)
    stamp()
    e("v_bfe_u32 v2, v0, 4, 6")
    e("v_lshlrev_b32 v2, 2, v2")
    e(f"ds_write_b32 v2, v16 offset:{MS}")
    e("s_waitcnt lgkmcnt(0)")
    e("s_barrier")
    stamp()
    e("v_and_b32 v2, 63, v0")
    e("v_lshlrev_b32 v2, 2, v2")
    e(f"ds_read_b32 v17, v2 offset:{MS}")
    e("s_waitcnt lgkmcnt(0)")
    nop(1)
    for rr in (8, 4, 2, 1):
        e(f"v_max_f32_dpp v17, v17, v17 row_ror:{rr} row_mask:0xf bank_mask:0xf")
        nop(2)
    allreduce_g([17], [19], op="v_max_f32")
    e("v_sub_f32 v19, v16, v17")
    e(f"v_mul_f32 v19, {LOG2E:#x}, v19")
    e("v_exp_f32 v19, v19")
    nop(1)
    for a in ACC + [18]: e(f"v_mul_f32 v{a}, v{a}, v19")
    allreduce_g(ACC + [18], S[:9])
    e("v_and_b32 v2, 15, v0")
    e("v_lshlrev_b32 v2, 5, v2")
    e("v_add_u32 v2, s78, v2")
    e(f"ds_write_b128 v2, v[{ACC[0]}:{ACC[3]}] offset:{OP}")
    e(f"ds_write_b128 v2, v[{ACC[4]}:{ACC[7]}] offset:{OP+16}")
    e("v_mov_b32 v2, s69")
    e("v_lshlrev_b32 v2, 2, v2")
    e(f"ds_write_b32 v2, v18 offset:{LP}")
    e("s_waitcnt lgkmcnt(0)")
    e("s_barrier")
    L = f"Lo{int(ffn)}"
    e("s_cmp_ge_u32 s69, 2")
    e(f"s_cbranch_scc1 {L}_a")
    e("v_lshlrev_b32 v2, 2, v0")
    for w in range(16): e(f"ds_read_b32 v{88+w}, v2 offset:{OP+512*w}")
    e("s_waitcnt lgkmcnt(0)")
    for w in range(1, 16): e(f"v_add_f32 v88, v88, v{88+w}")
    e(f"ds_write_b32 v2, v88 offset:{OS}")
    e(f"s_branch {L}_b")
    lab(f"{L}_a")
    e("s_cmp_lg_u32 s69, 2")
    e(f"s_cbranch_scc1 {L}_c")
    e("v_lshlrev_b32 v2, 2, v0")
    e("v_mov_b32 v3, 0")
    e(f"ds_write_b32 v2, v3 offset:{OS}")
    e(f"s_branch {L}_b")
    lab(f"{L}_c")
    e("s_cmp_lg_u32 s69, 3")
    e(f"s_cbranch_scc1 {L}_b")
    e("v_mov_b32 v2, 0")
    for r in range(4): e(f"ds_read_b128 v[{88+4*r}:{91+4*r}], v2 offset:{LP+16*r}")
    e("s_waitcnt lgkmcnt(0)")
    for w in range(1, 16): e(f"v_add_f32 v88, v88, v{88+w}")
    e("v_mov_b32 v89, v88")
    e("v_mov_b32 v88, v17")
    e("v_mov_b32 v2, s92")
    e(f"buffer_store_dwordx2 v[88:89], v2, s[{SWS}:{SWS+3}], 0 offen")
    lab(f"{L}_b")
    e("s_waitcnt lgkmcnt(0)")
    e("s_barrier")
    stamp()
    e("v_lshlrev_b32 v2, 2, v22")
    for i in range(11): e(f"ds_read_b32 v{88+i}, v2 offset:{OS+48*i}")
    for a in ACC: e(f"v_mov_b32 v{a}, 0")
    e("s_waitcnt lgkmcnt(0)")
    for i in range(11):
        vm.wait(f'wo{i}')
        for j in range(4):
            w = WO[i] + j
            e(f"v_lshlrev_b32 v19, 16, v{w}")
            e(f"v_and_b32 v20, 0xffff0000, v{w}")
            e(f"v_fmac_f32 v{ACC[2*j]}, v{88+i}, v19")
            e(f"v_fmac_f32 v{ACC[2*j+1]}, v{88+i}, v20")
    e("v_mov_b32 v3, 2560")
    e("v_mul_u32_u24 v2, v22, v3")
    e("v_lshl_add_u32 v2, v23, 5, v2")
    e(f"ds_write_b128 v2, v[{ACC[0]}:{ACC[3]}] offset:{YP}")
    e(f"ds_write_b128 v2, v[{ACC[4]}:{ACC[7]}] offset:{YP+16}")
    e("s_waitcnt lgkmcnt(0)")
    e("s_barrier")
    stamp()
    if STAMP:
        e("s_lshl_b32 s94, s2, 4")
        e("s_add_u32 s94, s94, s69")
        e("s_lshl_b32 s94, s94, 8")
        e(f"s_add_u32 s94, s94, {3<<20}")
        e("v_and_b32 v2, 63, v0")
        e("v_lshlrev_b32 v2, 2, v2")
        e("v_add_u32 v2, s94, v2")
        e(f"buffer_store_dword v126, v2, s[{SWS}:{SWS+3}], 0 offen")
    e("s_cmp_ge_u32 s69, 10")
    e("s_cbranch_scc1 Lk1_end")
    e("v_lshlrev_b32 v2, 2, v0")
    for gq in range(12): e(f"ds_read_b32 v{88+gq}, v2 offset:{YP+2560*gq}")
    e("s_waitcnt lgkmcnt(0)")
    for gq in range(1, 12): e(f"v_add_f32 v88, v88, v{88+gq}")
    e("v_add_u32 v2, s93, v2")
    e(f"buffer_store_dword v88, v2, s[{SWS}:{SWS+3}], 0 offen")
    e("s_branch Lk1_end")

def k1():
    lab(f"{NAME}_k1_kernel")
    e("s_cmp_ge_u32 s2, 256")
    e("s_cbranch_scc1 Lk1_end")
    e("s_load_dwordx16 s[16:31], s[0:1], 0")
    e("s_load_dwordx2 s[32:33], s[0:1], 88")
    e("v_lshrrev_b32 v2, 6, v0")
    nop(1)
    e("v_readfirstlane_b32 s69, v2")
    e("s_and_b32 s3, s2, 31")
    e("s_lshr_b32 s4, s2, 5")
    e("s_and_b32 s5, s4, 1")
    e("s_lshr_b32 s6, s4, 1")
    e("s_mul_i32 s70, s69, 40")
    e("s_lshl_b32 s71, s2, 5")
    e("s_mul_i32 s72, s2, 20480")
    e("s_lshl_b32 s73, s69, 14")
    e("s_mov_b32 s74, 4096"); e("s_mov_b32 s75, 8192"); e("s_mov_b32 s76, 12288")
    e("s_lshl_b32 s77, s5, 12")
    e("s_lshl_b32 s78, s69, 9")
    e("s_lshl_b32 s79, s69, 7")
    for i in range(10): e(f"s_mov_b32 s{80+i}, {i*8192}")
    e("s_mul_i32 s90, s2, 5120")
    e(f"s_add_u32 s90, s90, {Y2_OFF}")
    e("s_lshl_b32 s92, s2, 3")
    e(f"s_add_u32 s92, s92, {ML_OFF}")
    e("s_mul_i32 s93, s2, 2560")
    e("s_waitcnt lgkmcnt(0)")
    srd(SX, 16, 17, 2560)
    e("s_lshl_b32 s7, s5, 5")
    e("s_add_u32 s7, s7, s3")
    e("s_lshl_b32 s7, s7, 20")
    e("s_lshl_b32 s8, s6, 18")
    e("s_add_u32 s7, s7, s8")
    e("s_add_u32 s10, s18, s7"); e("s_addc_u32 s11, s19, 0")
    srd(SK, 10, 11, 262144)
    e("s_add_u32 s10, s20, s7"); e("s_addc_u32 s11, s21, 0")
    srd(SV, 10, 11, 262144)
    e("s_lshl_b32 s7, s3, 8")
    e("s_add_u32 s10, s22, s7"); e("s_addc_u32 s11, s23, 0")
    e(f"s_sub_u32 s8, {640*8192}, s7")
    srd(SWQ, 10, 11, "s8")
    e("s_mul_i32 s7, s3, 163840")
    e("s_add_u32 s10, s24, s7"); e("s_addc_u32 s11, s25, 0")
    e(f"s_sub_u32 s8, {4096*1280}, s7")
    srd(SWO, 10, 11, "s8")
    srd(SW1, 28, 29, 640*3456)
    srd(SW2, 30, 31, 1728*1280)
    srd(SWS, 32, 33, 8 << 20)
    e("s_cmp_lt_u32 s2, 108")
    e("s_cbranch_scc1 Lk1_ffn")
    k1_body(False)
    lab("Lk1_ffn")
    k1_body(True)
    lab("Lk1_end")
    e("s_endpgm")

def k2():
    W, RA, RB = 0, 512, 1536
    lab(f"{NAME}_k2_kernel")
    e("s_cmp_ge_u32 s2, 40")
    e("s_cbranch_scc1 Lk2_end")
    e("s_load_dwordx2 s[16:17], s[0:1], 0")
    e("s_load_dwordx2 s[18:19], s[0:1], 64")
    e("s_load_dwordx2 s[20:21], s[0:1], 72")
    e("s_load_dwordx2 s[22:23], s[0:1], 88")
    e("s_cmp_ge_u32 s2, 20")
    e("s_cselect_b32 s3, 1, 0")
    e("s_mul_i32 s4, s3, 20")
    e("s_sub_u32 s4, s2, s4")
    e("s_waitcnt lgkmcnt(0)")
    srd(36, 16, 17, 2560)
    srd(40, 18, 19, 1280)
    srd(44, 20, 21, 2560)
    srd(48, 22, 23, 2 << 20)
    e(f"s_add_u32 s24, s22, {Y2_OFF}"); e("s_addc_u32 s25, s23, 0")
    srd(52, 24, 25, 108*5120)
    e("v_lshrrev_b32 v1, 5, v0")
    e("v_and_b32 v2, 31, v0")
    e("v_and_b32 v3, 127, v0")
    e("v_lshrrev_b32 v4, 2, v3")
    e("v_and_b32 v5, 3, v3")
    e("v_lshl_add_u32 v4, v5, 6, v4")
    e("s_lshl_b32 s5, s3, 5")
    e("v_add_u32 v4, s5, v4")
    e("v_lshlrev_b32 v4, 3, v4")
    e(f"v_add_u32 v4, {ML_OFF}, v4")
    e("buffer_load_dwordx2 v[6:7], v4, s[48:51], 0 offen")
    e("v_lshrrev_b32 v4, 2, v1")
    e("v_and_b32 v5, 3, v1")
    e("v_lshl_add_u32 v4, v5, 6, v4")
    e("v_add_u32 v4, s5, v4")
    e("v_mov_b32 v5, 2560")
    e("v_mul_u32_u24 v4, v4, v5")
    e("s_lshl_b32 s6, s4, 7")
    e("v_lshl_add_u32 v4, v2, 2, v4")
    e("v_add_u32 v4, s6, v4")
    for i in range(16):
        e(f"buffer_load_dword v{16+i}, v4, s[48:51], 0 offen")
        if i < 15: e("v_add_u32 v4, 5120, v4")
    e("v_lshlrev_b32 v4, 1, v1")
    e("v_add_u32 v4, s3, v4")
    e("v_mul_u32_u24 v4, v4, v5")
    e("v_lshl_add_u32 v4, v2, 2, v4")
    e("v_add_u32 v4, s6, v4")
    for i in range(14):
        e(f"buffer_load_dword v{32+i}, v4, s[52:55], 0 offen")
        if i < 13: e("v_add_u32 v4, 40960, v4")
    e("v_and_b32 v4, 63, v0")
    e("v_mul_u32_u24 v4, 20, v4")
    e("s_mul_i32 s7, s3, 1280")
    e("v_add_u32 v5, s7, v4")
    e("buffer_load_dwordx4 v[48:51], v5, s[36:39], 0 offen")
    e("buffer_load_dword v52, v5, s[36:39], 0 offen offset:16")
    e("buffer_load_dwordx4 v[56:59], v4, s[40:43], 0 offen")
    e("buffer_load_dword v60, v4, s[40:43], 0 offen offset:16")
    e("s_waitcnt vmcnt(34)")
    e("v_mov_b32 v8, v6")
    nop(2)
    e("v_max_f32_dpp v8, v8, v8 quad_perm:[1,0,3,2] row_mask:0xf bank_mask:0xf")
    nop(2)
    e("v_max_f32_dpp v8, v8, v8 quad_perm:[2,3,0,1] row_mask:0xf bank_mask:0xf")
    e("v_sub_f32 v9, v6, v8")
    e(f"v_mul_f32 v9, {LOG2E:#x}, v9")
    e("v_exp_f32 v9, v9")
    nop(1)
    e("v_mul_f32 v10, v9, v7")
    nop(2)
    e("v_add_f32_dpp v10, v10, v10 quad_perm:[1,0,3,2] row_mask:0xf bank_mask:0xf")
    nop(2)
    e("v_add_f32_dpp v10, v10, v10 quad_perm:[2,3,0,1] row_mask:0xf bank_mask:0xf")
    e("v_rcp_f32 v10, v10")
    nop(1)
    e("v_mul_f32 v9, v9, v10")
    e("v_lshlrev_b32 v4, 2, v3")
    e(f"ds_write_b32 v4, v9 offset:{W}")
    e("s_waitcnt lgkmcnt(0)")
    e("s_barrier")
    e("v_lshlrev_b32 v4, 2, v1")
    for i in range(16): e(f"ds_read_b32 v{64+i}, v4 offset:{W+32*i}")
    e("s_waitcnt lgkmcnt(0)")
    e("s_waitcnt vmcnt(18)")
    e("v_mul_f32 v8, v16, v64")
    for i in range(1, 16): e(f"v_fmac_f32 v8, v{16+i}, v{64+i}")
    e("s_waitcnt vmcnt(4)")
    e("v_add_f32 v9, v32, v33")
    for i in range(2, 14): e(f"v_add_f32 v9, v9, v{32+i}")
    e("v_lshlrev_b32 v4, 2, v0")
    e(f"ds_write_b32 v4, v8 offset:{RA}")
    e(f"ds_write_b32 v4, v9 offset:{RB}")
    e("s_waitcnt vmcnt(0)")
    e("v_mov_b32 v10, 0")
    for j in range(5):
        e(f"v_lshlrev_b32 v11, 16, v{48+j}")
        e(f"v_lshlrev_b32 v12, 16, v{56+j}")
        e("v_mul_f32 v11, v11, v12")
        e(f"v_and_b32 v12, 0xffff0000, v{48+j}")
        e(f"v_and_b32 v13, 0xffff0000, v{56+j}")
        e("v_mul_f32 v12, v12, v13")
        e("v_cvt_pk_bf16_f32 v11, v11, v12")
        e("v_lshlrev_b32 v12, 16, v11")
        e("v_and_b32 v11, 0xffff0000, v11")
        e("v_add_f32 v10, v10, v12")
        e("v_add_f32 v10, v10, v11")
    for rr in (8, 4, 2, 1):
        nop(2)
        e(f"v_add_f32_dpp v10, v10, v10 row_ror:{rr} row_mask:0xf bank_mask:0xf")
    allreduce_g([10], [11])
    e("v_cvt_pk_bf16_f32 v10, v10, v10")
    e("v_lshlrev_b32 v10, 16, v10")
    e("v_mul_f32 v10, 0xbfb8aa3b, v10")
    e("v_exp_f32 v10, v10")
    nop(1)
    e("v_add_f32 v10, 1.0, v10")
    e("v_rcp_f32 v10, v10")
    nop(1)
    e("v_cvt_pk_bf16_f32 v10, v10, v10")
    e("v_lshlrev_b32 v10, 16, v10")
    e("v_sub_f32 v11, 1.0, v10")
    e("v_cvt_pk_bf16_f32 v11, v11, v11")
    e("v_lshlrev_b32 v11, 16, v11")
    e("s_waitcnt lgkmcnt(0)")
    e("s_barrier")
    e("v_lshlrev_b32 v4, 2, v2")
    for r in range(8):
        e(f"ds_read_b32 v{16+r}, v4 offset:{RA+128*r}")
        e(f"ds_read_b32 v{32+r}, v4 offset:{RB+128*r}")
    e("s_waitcnt lgkmcnt(0)")
    for r in range(1, 8):
        e(f"v_add_f32 v16, v16, v{16+r}")
        e(f"v_add_f32 v32, v32, v{32+r}")
    e("v_cvt_pk_bf16_f32 v16, v16, v32")
    e("v_lshlrev_b32 v17, 16, v16")
    e("v_and_b32 v18, 0xffff0000, v16")
    e("v_mul_f32 v17, v10, v17")
    e("v_mul_f32 v18, v11, v18")
    e("v_cvt_pk_bf16_f32 v16, v17, v18")
    e("v_lshlrev_b32 v17, 16, v16")
    e("v_and_b32 v18, 0xffff0000, v16")
    e("v_add_f32 v17, v17, v18")
    e("v_cvt_pk_bf16_f32 v17, v17, v17")
    e("v_cmp_gt_u32 vcc, 32, v0")
    e("s_and_saveexec_b64 s[8:9], vcc")
    e("s_cbranch_execz Lk2_end")
    e("v_lshlrev_b32 v4, 1, v2")
    e("s_lshl_b32 s6, s4, 6")
    e("v_add_u32 v4, s6, v4")
    e("v_add_u32 v4, s7, v4")
    e("buffer_store_short v17, v4, s[44:47], 0 offen")
    lab("Lk2_end")
    e("s_endpgm")

hdr = open(f"cdna_kernels/{NAME}.s.ref").read().split("; Override launch")[0]
o = [hdr.rstrip("\n")]
o.append(f"; @launch kernel={NAME}_k1_kernel grid=(256,1,1) block=(1024,1,1) lds={LDS1}")
o.append(f"; @launch kernel={NAME}_k2_kernel grid=(40,1,1) block=(256,1,1) lds=4096")
o.append('.amdgcn_target "amdgcn-amd-amdhsa--gfx950"')
o.append(".text")
for k in ("k1", "k2"):
    o.append(f".globl {NAME}_{k}_kernel")
    o.append(f".type {NAME}_{k}_kernel,@function")
o.append(".p2align 8")
k1()
out.append(".p2align 8")
k2()
o += out
o.append('.section .rodata,"a"')
for k, nv in (("k1", 128), ("k2", 96)):
    o.append(".p2align 6")
    o.append(f".amdhsa_kernel {NAME}_{k}_kernel")
    o.append(f"  .amdhsa_next_free_vgpr {nv}")
    o.append("  .amdhsa_next_free_sgpr 100")
    o.append(f"  .amdhsa_accum_offset {nv}")
    o.append("  .amdhsa_group_segment_fixed_size 0")
    o.append("  .amdhsa_kernarg_size 96")
    o.append("  .amdhsa_user_sgpr_count 2")
    o.append("  .amdhsa_user_sgpr_kernarg_segment_ptr 1")
    o.append("  .amdhsa_system_sgpr_workgroup_id_x 1")
    o.append(".end_amdhsa_kernel")
open(sys.argv[1], "w").write("\n".join(o) + "\n")
```

```python
import sys
NAME = "gated_mix__mha_block_cached__dense_activation_silu__decode"
OPT = sys.argv[2] if len(sys.argv) > 2 else "nt,D8"
NT = " nt" if 'nt' in OPT else ""
import re as _re
DEPTH = int(_re.search(r"D(\d+)", OPT).group(1))
out = []
def e(s): out.append("    " + s)
def lab(s): out.append(s + ":")
def nop(n): e(f"s_nop {n-1}")

XS, QP, QB, HP, HS, MS, LP, OS, OP, YP = 0, 8192, 16384, 16640, 18688, 18816, 19072, 19200, 20480, 28672
LDS1 = 28672 + 13 * 2560
Y_OFF, ML_OFF, Y2_OFF = 0, 1 << 20, 2 << 20
LOG2E = 0x3fb8aa3b
SCALE = 0x3db504f3

STAMP = 'stamp' in OPT
DBGM = 'dbg' in OPT
dbg_n = [0]
def dstamp(neg=False):
    if not DBGM: return
    k = dbg_n[0]; dbg_n[0] += 1
    e('s_memrealtime s[94:95]'); e('s_waitcnt lgkmcnt(0)')
    if neg: e('s_not_b32 s94, s94')
    e('v_mov_b32 v126, s94'); e(f'v_mov_b32 v127, {4*k}')
    e('s_mov_b64 s[96:97], exec'); e('s_mov_b64 exec, 1')
    e('buffer_atomic_umax v126, v127, s[12:15], 0 offen')
    e('s_mov_b64 exec, s[96:97]')

stamp_n = [0]
def stamp():
    if not STAMP: return
    k = stamp_n[0]; stamp_n[0] += 1
    e(f"s_memrealtime s[{94}:{95}]")
    e("s_waitcnt lgkmcnt(0)")
    e(f"v_writelane_b32 v126, s94, {k}")
class VM:
    def __init__(s): s.l = []
    def issue(s, tag): s.l.append(tag)
    def wait(s, tag):
        n = len(s.l) - 1 - s.l.index(tag)
        e(f"s_waitcnt vmcnt({n})")

def allreduce_g(regs, tmp, op="v_add_f32"):
    for r, t in zip(regs, tmp): e(f"v_mov_b32 v{t}, v{r}")
    nop(2)
    for r, t in zip(regs, tmp): e(f"v_permlane16_swap_b32 v{r}, v{t}")
    for r, t in zip(regs, tmp): e(f"{op} v{r}, v{r}, v{t}")
    for r, t in zip(regs, tmp): e(f"v_mov_b32 v{t}, v{r}")
    nop(2)
    for r, t in zip(regs, tmp): e(f"v_permlane32_swap_b32 v{r}, v{t}")
    for r, t in zip(regs, tmp): e(f"{op} v{r}, v{r}, v{t}")

def srd(d, lo, hi, nrec):
    e(f"s_mov_b32 s{d}, s{lo}")
    e(f"s_and_b32 s{d+1}, s{hi}, 0xffff")
    e(f"s_mov_b32 s{d+2}, {nrec}")
    e(f"s_mov_b32 s{d+3}, 0x00020000")

SX, SK, SV, SWQ, SWO, SW1, SW2, SWS = 36, 40, 44, 48, 52, 56, 60, 64

def k1_body(ffn):
    vm = VM()
    stamp_n[0] = 0
    stamp()
    dbg_n[0] = 0
    dstamp(True)
    D = DEPTH
    D = 16
    WIN = [24 + 4*i for i in range(16)]
    WQ = [88 + 4*i for i in range(10)]
    KR = [WIN[i] for i in range(16)]
    VR = [WIN[i] for i in range(16)]
    WO = [WIN[i] for i in range(11)]
    S = [88 + i for i in range(16)]
    ACC = [104 + i for i in range(8)]
    W1 = [64 + i for i in range(5)]
    W2 = [69 + i for i in range(16)]
    K0N = 10
    Q = [4, 5, 6, 7]
    e("v_lshlrev_b32 v2, 1, v0")
    e(f"buffer_load_ushort v16, v2, s[{SX}:{SX+3}], 0 offen"); vm.issue('x0')
    e(f"buffer_load_ushort v17, v2, s[{SX}:{SX+3}], 0 offen offset:1280"); vm.issue('x1')
    e("v_bfe_u32 v8, v0, 4, 2")
    e("v_and_b32 v9, 15, v0")
    e("v_mul_u32_u24 v3, 10, v8")
    e("v_add_u32 v3, s70, v3")
    e("v_lshlrev_b32 v3, 13, v3")
    e("v_lshl_add_u32 v3, v9, 4, v3")
    for i in range(10):
        e(f"buffer_load_dwordx4 v[{WQ[i]}:{WQ[i]+3}], v3, s[{SWQ}:{SWQ+3}], s{80+i} offen"); vm.issue(f'wq{i}')
    if ffn:
        e("v_lshrrev_b32 v10, 3, v0")
        e("v_mul_u32_u24 v10, 5, v10")
        e("v_mov_b32 v11, 3456")
        e("v_mul_u32_u24 v10, v10, v11")
        e("v_and_b32 v11, 7, v0")
        e("v_lshl_add_u32 v10, v11, 2, v10")
        e("v_add_u32 v10, s71, v10")
        for i in range(5):
            e(f"buffer_load_dword v{W1[i]}, v10, s[{SW1}:{SW1+3}], 0 offen"); vm.issue(f'w1{i}')
            if i < 4: e("v_add_u32 v10, 3456, v10")
        e("v_lshlrev_b32 v10, 2, v0")
        e("v_add_u32 v10, s72, v10")
        for r in range(16):
            e(f"buffer_load_dword v{W2[r]}, v10, s[{SW2}:{SW2+3}], 0 offen"); vm.issue(f'w2{r}')
            if r < 15: e("v_add_u32 v10, 1280, v10")
    stamp()
    e("s_barrier")
    stamp()
    e("v_lshlrev_b32 v1, 8, v8")
    e("v_add_u32 v1, s73, v1")
    e("v_lshl_add_u32 v1, v9, 4, v1")
    def kv_load(reg, srdb, i, tag):
        so = ["0", "s74", "s75", "s76"][i // 4]
        e(f"buffer_load_dwordx4 v[{reg}:{reg+3}], v1, s[{srdb}:{srdb+3}], {so} offen offset:{(i%4)*1024}{NT}"); vm.issue(tag)
    def stream(n):
        if n < 16: kv_load(KR[n], SK, n, f'k{n}')
        elif n < 32: kv_load(VR[n-16], SV, n-16, f'v{n-16}')
    for i in range(K0N): stream(i)
    vm.wait('x1')
    stamp()
    e("v_lshlrev_b32 v16, 16, v16")
    e("v_lshlrev_b32 v17, 16, v17")
    e("v_lshlrev_b32 v2, 2, v0")
    e(f"ds_write_b32 v2, v16 offset:{XS}")
    e(f"ds_write_b32 v2, v17 offset:{XS+4096}")
    e("s_waitcnt lgkmcnt(0)")
    e("s_barrier")
    stamp()
    e("v_mul_u32_u24 v2, 10, v8")
    e("v_add_u32 v2, s70, v2")
    e("v_lshlrev_b32 v2, 2, v2")
    e("v_add_u32 v2, s77, v2")
    QA = [8+i for i in range(8)]
    e("v_mov_b32 v22, v8")
    e("v_mov_b32 v23, v9")
    for a in QA: e(f"v_mov_b32 v{a}, 0")
    for half in range(2):
        for k in range(3):
            pass
        e(f"ds_read_b64 v[16:17], v2 offset:{XS+half*20}")
        e(f"ds_read_b64 v[18:19], v2 offset:{XS+half*20+8}")
        e(f"ds_read_b32 v20, v2 offset:{XS+half*20+16}")
        e("s_waitcnt lgkmcnt(0)")
        for ii in range(5):
            i = half*5 + ii
            vm.wait(f'wq{i}')
            if i in (0, 9): stamp()
            for j in range(4):
                w = WQ[i] + j
                e(f"v_lshlrev_b32 v21, 16, v{w}")
                e(f"v_and_b32 v3, 0xffff0000, v{w}")
                e(f"v_fmac_f32 v{QA[2*j]}, v{16+ii}, v21")
                e(f"v_fmac_f32 v{QA[2*j+1]}, v{16+ii}, v3")
    allreduce_g(QA, [16+i for i in range(6)] + [2, 3])
    e("v_lshlrev_b32 v2, 5, v23")
    e("v_add_u32 v2, s78, v2")
    e(f"ds_write_b128 v2, v[8:11] offset:{QP}")
    e(f"ds_write_b128 v2, v[12:15] offset:{QP+16}")
    if ffn:
        e("v_lshrrev_b32 v2, 3, v0")
        e("v_mul_u32_u24 v2, 20, v2")
        for i in range(5):
            e(f"ds_read_b32 v{8+i}, v2 offset:{XS+4*i}")
            e(f"ds_read_b32 v{13+i}, v2 offset:{XS+4096+4*i}")
        for a in (18, 19, 20, 21): e(f"v_mov_b32 v{a}, 0")
        e("s_waitcnt lgkmcnt(0)")
        vm.wait('w14')
        for i in range(5):
            e(f"v_lshlrev_b32 v2, 16, v{W1[i]}")
            e(f"v_and_b32 v3, 0xffff0000, v{W1[i]}")
            e(f"v_fmac_f32 v18, v{8+i}, v2")
            e(f"v_fmac_f32 v19, v{8+i}, v3")
            e(f"v_fmac_f32 v20, v{13+i}, v2")
            e(f"v_fmac_f32 v21, v{13+i}, v3")
        nop(2)
        for a in (18, 19, 20, 21):
            e(f"v_add_f32_dpp v{a}, v{a}, v{a} row_ror:8 row_mask:0xf bank_mask:0xf")
        allreduce_g([18, 19, 20, 21], [8, 9, 10, 11])
        e("v_and_b32 v2, 7, v0")
        e("v_lshlrev_b32 v2, 3, v2")
        e("v_add_u32 v2, s79, v2")
        e(f"ds_write_b64 v2, v[18:19] offset:{HP}")
        e(f"ds_write_b64 v2, v[20:21] offset:{HP+64}")
    e("s_waitcnt lgkmcnt(0)")
    e("s_barrier")
    stamp()
    L = f"Lq{int(ffn)}"
    e("s_cmp_ge_u32 s69, 2")
    e(f"s_cbranch_scc1 {L}_a")
    e("v_lshlrev_b32 v2, 2, v0")
    for w in range(16):
        e(f"ds_read_b32 v{8+w}, v2 offset:{QP+512*w}") if w < 14 else None
    e("s_waitcnt lgkmcnt(0)")
    for w in range(1, 14): e(f"v_add_f32 v8, v8, v{8+w}")
    e(f"ds_read_b32 v9, v2 offset:{QP+512*14}")
    e(f"ds_read_b32 v10, v2 offset:{QP+512*15}")
    e("s_waitcnt lgkmcnt(0)")
    e("v_add_f32 v8, v8, v9")
    e("v_add_f32 v8, v8, v10")
    e("v_cvt_pk_bf16_f32 v8, v8, v8")
    e("v_lshlrev_b32 v2, 1, v0")
    e(f"ds_write_b16 v2, v8 offset:{QB}")
    e(f"s_branch {L}_b")
    lab(f"{L}_a")
    if ffn:
        e("s_cmp_lg_u32 s69, 2")
        e(f"s_cbranch_scc1 {L}_b")
        e("v_and_b32 v2, 31, v0")
        e("v_lshlrev_b32 v2, 2, v2")
        for w in range(14): e(f"ds_read_b32 v{8+w}, v2 offset:{HP+128*w}")
        e("s_waitcnt lgkmcnt(0)")
        for w in range(1, 14): e(f"v_add_f32 v8, v8, v{8+w}")
        e(f"ds_read_b32 v9, v2 offset:{HP+128*14}")
        e(f"ds_read_b32 v10, v2 offset:{HP+128*15}")
        e("s_waitcnt lgkmcnt(0)")
        e("v_add_f32 v8, v8, v9")
        e("v_add_f32 v8, v8, v10")
        e("v_cvt_pk_bf16_f32 v8, v8, v8")
        e("v_lshlrev_b32 v8, 16, v8")
        e(f"v_mul_f32 v9, 0xbfb8aa3b, v8")
        e("v_exp_f32 v9, v9")
        nop(1)
        e("v_add_f32 v9, 1.0, v9")
        e("v_rcp_f32 v9, v9")
        nop(1)
        e("v_mul_f32 v8, v8, v9")
        e("v_cvt_pk_bf16_f32 v8, v8, v8")
        e("v_lshlrev_b32 v8, 16, v8")
        e(f"ds_write_b32 v2, v8 offset:{HS}")
    lab(f"{L}_b")
    e("s_waitcnt lgkmcnt(0)")
    e("s_barrier")
    stamp()
    dstamp(); dstamp(True)
    e("v_lshlrev_b32 v2, 4, v23")
    e(f"ds_read_b128 v[4:7], v2 offset:{QB}")
    if ffn:
        e("v_mov_b32 v2, 0")
        for r in range(4):
            e(f"ds_read_b128 v[{8+4*r}:{11+4*r}], v2 offset:{HS+16*r}")
        e("s_waitcnt lgkmcnt(0)")
        vm.wait('w215')
        for a in (122, 123, 124, 125): e(f"v_mov_b32 v{a}, 0")
        for r in range(16):
            e(f"v_lshlrev_b32 v2, 16, v{W2[r]}")
            e(f"v_and_b32 v3, 0xffff0000, v{W2[r]}")
            e(f"v_fmac_f32 v122, v{8+r}, v2")
            e(f"v_fmac_f32 v123, v{8+r}, v3")
        e("v_mov_b32 v2, 0")
        for r in range(4):
            e(f"ds_read_b128 v[{8+4*r}:{11+4*r}], v2 offset:{HS+64+16*r}")
        e("s_waitcnt lgkmcnt(0)")
        for r in range(16):
            e(f"v_lshlrev_b32 v2, 16, v{W2[r]}")
            e(f"v_and_b32 v3, 0xffff0000, v{W2[r]}")
            e(f"v_fmac_f32 v124, v{8+r}, v2")
            e(f"v_fmac_f32 v125, v{8+r}, v3")
        e("s_cmp_ge_u32 s69, 5")
        e(f"s_cbranch_scc1 Ly2skip")
        e("v_lshlrev_b32 v2, 3, v0")
        e("v_add_u32 v2, s90, v2")
        e(f"buffer_store_dwordx2 v[122:123], v2, s[{SWS}:{SWS+3}], 0 offen")
        e(f"buffer_store_dwordx2 v[124:125], v2, s[{SWS}:{SWS+3}], 0 offen offset:2560")
        lab("Ly2skip")
        nop(2)
    e("s_waitcnt lgkmcnt(0)")
    for i in range(K0N, 16): stream(i)
    stamp()
    for i in range(16):
        vm.wait(f'k{i}')
        for j in range(4):
            src2 = "0" if j == 0 else f"v{S[i]}"
            e(f"v_dot2_f32_bf16 v{S[i]}, v{KR[i]+j}, v{Q[j]}, {src2}")
        stream(i + D)
    nop(3)
    for rr in (8, 4, 2, 1):
        for i in range(16): e(f"v_add_f32_dpp v{S[i]}, v{S[i]}, v{S[i]} row_ror:{rr} row_mask:0xf bank_mask:0xf")
    stamp()
    e("v_mov_b32 v3, 52429")
    e("v_mul_u32_u24 v2, v0, v3")
    e("v_lshrrev_b32 v22, 22, v2")
    e("v_mul_u32_u24 v3, 80, v22")
    e("v_sub_u32 v23, v0, v3")
    e("v_mov_b32 v3, 1280")
    e("v_mul_u32_u24 v21, v22, v3")
    e("v_lshl_add_u32 v21, v23, 4, v21")
    def wo_load(i):
        e(f"v_add_u32 v2, {i*15360}, v21")
        e(f"buffer_load_dwordx4 v[{WO[i]}:{WO[i]+3}], v2, s[{SWO}:{SWO+3}], 0 offen"); vm.issue(f'wo{i}')
    for rep in range(2):
        for i in range(0, 16, 2):
            e(f"v_cvt_pk_bf16_f32 v2, v{S[i]}, v{S[i+1]}")
            e(f"v_lshlrev_b32 v{S[i]}, 16, v2")
            e(f"v_and_b32 v{S[i+1]}, 0xffff0000, v2")
        if rep == 0:
            for i in range(16): e(f"v_mul_f32 v{S[i]}, {SCALE:#x}, v{S[i]}")
    e(f"v_max3_f32 v16, v{S[0]}, v{S[1]}, v{S[2]}")
    for i in range(3, 15, 2): e(f"v_max3_f32 v16, v16, v{S[i]}, v{S[i+1]}")
    e(f"v_max_f32 v16, v16, v{S[15]}")
    e(f"v_mul_f32 v17, 0xbfb8aa3b, v16")
    e(f"s_mov_b32 s91, {LOG2E:#x}")
    for i in range(16): e(f"v_fma_f32 v{S[i]}, v{S[i]}, s91, v17")
    for i in range(16): e(f"v_exp_f32 v{S[i]}, v{S[i]}")
    nop(1)
    e(f"v_add_f32 v18, v{S[0]}, v{S[1]}")
    for i in range(2, 16): e(f"v_add_f32 v18, v18, v{S[i]}")
    for a in ACC: e(f"v_mov_b32 v{a}, 0")
    for i in range(16):
        vm.wait(f'v{i}')
        for j in range(4):
            w = VR[i] + j
            e(f"v_lshlrev_b32 v19, 16, v{w}")
            e(f"v_and_b32 v20, 0xffff0000, v{w}")
            e(f"v_fmac_f32 v{ACC[2*j]}, v{S[i]}, v19")
            e(f"v_fmac_f32 v{ACC[2*j+1]}, v{S[i]}, v20")
        stream(16 + i + D)
        if i < 11: wo_load(i)
    stamp()
    e("v_bfe_u32 v2, v0, 4, 6")
    e("v_lshlrev_b32 v2, 2, v2")
    e(f"ds_write_b32 v2, v16 offset:{MS}")
    e("s_waitcnt lgkmcnt(0)")
    e("s_barrier")
    stamp()
    dstamp(); dstamp(True)
    e("v_and_b32 v2, 63, v0")
    e("v_lshlrev_b32 v2, 2, v2")
    e(f"ds_read_b32 v17, v2 offset:{MS}")
    e("s_waitcnt lgkmcnt(0)")
    nop(1)
    for rr in (8, 4, 2, 1):
        e(f"v_max_f32_dpp v17, v17, v17 row_ror:{rr} row_mask:0xf bank_mask:0xf")
        nop(2)
    allreduce_g([17], [19], op="v_max_f32")
    e("v_sub_f32 v19, v16, v17")
    e(f"v_mul_f32 v19, {LOG2E:#x}, v19")
    e("v_exp_f32 v19, v19")
    nop(1)
    for a in ACC + [18]: e(f"v_mul_f32 v{a}, v{a}, v19")
    allreduce_g(ACC + [18], S[:9])
    e("v_and_b32 v2, 15, v0")
    e("v_lshlrev_b32 v2, 5, v2")
    e("v_add_u32 v2, s78, v2")
    e(f"ds_write_b128 v2, v[{ACC[0]}:{ACC[3]}] offset:{OP}")
    e(f"ds_write_b128 v2, v[{ACC[4]}:{ACC[7]}] offset:{OP+16}")
    e("v_mov_b32 v2, s69")
    e("v_lshlrev_b32 v2, 2, v2")
    e(f"ds_write_b32 v2, v18 offset:{LP}")
    e("s_waitcnt lgkmcnt(0)")
    e("s_barrier")
    L = f"Lo{int(ffn)}"
    e("s_cmp_ge_u32 s69, 2")
    e(f"s_cbranch_scc1 {L}_a")
    e("v_lshlrev_b32 v2, 2, v0")
    for w in range(16): e(f"ds_read_b32 v{88+w}, v2 offset:{OP+512*w}")
    e("s_waitcnt lgkmcnt(0)")
    for w in range(1, 16): e(f"v_add_f32 v88, v88, v{88+w}")
    e(f"ds_write_b32 v2, v88 offset:{OS}")
    e(f"s_branch {L}_b")
    lab(f"{L}_a")
    e("s_cmp_lg_u32 s69, 2")
    e(f"s_cbranch_scc1 {L}_c")
    e("v_lshlrev_b32 v2, 2, v0")
    e("v_mov_b32 v3, 0")
    e(f"ds_write_b32 v2, v3 offset:{OS}")
    e(f"s_branch {L}_b")
    lab(f"{L}_c")
    e("s_cmp_lg_u32 s69, 3")
    e(f"s_cbranch_scc1 {L}_b")
    e("v_mov_b32 v2, 0")
    for r in range(4): e(f"ds_read_b128 v[{88+4*r}:{91+4*r}], v2 offset:{LP+16*r}")
    e("s_waitcnt lgkmcnt(0)")
    for w in range(1, 16): e(f"v_add_f32 v88, v88, v{88+w}")
    e("v_mov_b32 v89, v88")
    e("v_mov_b32 v88, v17")
    e("v_mov_b32 v2, s92")
    e(f"buffer_store_dwordx2 v[88:89], v2, s[{SWS}:{SWS+3}], 0 offen")
    lab(f"{L}_b")
    e("s_waitcnt lgkmcnt(0)")
    e("s_barrier")
    stamp()
    e("v_lshlrev_b32 v2, 2, v22")
    for i in range(11): e(f"ds_read_b32 v{88+i}, v2 offset:{OS+48*i}")
    for a in ACC: e(f"v_mov_b32 v{a}, 0")
    e("s_waitcnt lgkmcnt(0)")
    for i in range(11):
        vm.wait(f'wo{i}')
        for j in range(4):
            w = WO[i] + j
            e(f"v_lshlrev_b32 v19, 16, v{w}")
            e(f"v_and_b32 v20, 0xffff0000, v{w}")
            e(f"v_fmac_f32 v{ACC[2*j]}, v{88+i}, v19")
            e(f"v_fmac_f32 v{ACC[2*j+1]}, v{88+i}, v20")
    e("v_mov_b32 v3, 2560")
    e("v_mul_u32_u24 v2, v22, v3")
    e("v_lshl_add_u32 v2, v23, 5, v2")
    e(f"ds_write_b128 v2, v[{ACC[0]}:{ACC[3]}] offset:{YP}")
    e(f"ds_write_b128 v2, v[{ACC[4]}:{ACC[7]}] offset:{YP+16}")
    e("s_waitcnt lgkmcnt(0)")
    e("s_barrier")
    stamp()
    dstamp(); dstamp(True)
    if STAMP:
        e("s_lshl_b32 s94, s2, 4")
        e("s_add_u32 s94, s94, s69")
        e("s_lshl_b32 s94, s94, 8")
        e(f"s_add_u32 s94, s94, {3<<20}")
        e("v_and_b32 v2, 63, v0")
        e("v_lshlrev_b32 v2, 2, v2")
        e("v_add_u32 v2, s94, v2")
        e(f"buffer_store_dword v126, v2, s[{SWS}:{SWS+3}], 0 offen")
    e("s_cmp_ge_u32 s69, 10")
    e("s_cbranch_scc1 Lk1_end")
    e("v_lshlrev_b32 v2, 2, v0")
    for gq in range(12): e(f"ds_read_b32 v{88+gq}, v2 offset:{YP+2560*gq}")
    e("s_waitcnt lgkmcnt(0)")
    for gq in range(1, 12): e(f"v_add_f32 v88, v88, v{88+gq}")
    e("v_add_u32 v2, s93, v2")
    e(f"buffer_store_dword v88, v2, s[{SWS}:{SWS+3}], 0 offen")
    e("s_branch Lk1_end")

def k1():
    lab(f"{NAME}_k1_kernel")
    e("s_cmp_ge_u32 s2, 256")
    e("s_cbranch_scc1 Lk1_end")
    e("s_load_dwordx16 s[16:31], s[0:1], 0")
    e("s_load_dwordx2 s[32:33], s[0:1], 88")
    e("s_load_dwordx2 s[34:35], s[0:1], 80")
    e("v_lshrrev_b32 v2, 6, v0")
    nop(1)
    e("v_readfirstlane_b32 s69, v2")
    e("s_and_b32 s3, s2, 31")
    e("s_lshr_b32 s4, s2, 5")
    e("s_and_b32 s5, s4, 1")
    e("s_lshr_b32 s6, s4, 1")
    e("s_mul_i32 s70, s69, 40")
    e("s_lshl_b32 s71, s2, 5")
    e("s_mul_i32 s72, s2, 20480")
    e("s_lshl_b32 s73, s69, 14")
    e("s_mov_b32 s74, 4096"); e("s_mov_b32 s75, 8192"); e("s_mov_b32 s76, 12288")
    e("s_lshl_b32 s77, s5, 12")
    e("s_lshl_b32 s78, s69, 9")
    e("s_lshl_b32 s79, s69, 7")
    for i in range(10): e(f"s_mov_b32 s{80+i}, {i*8192}")
    e("s_mul_i32 s90, s2, 5120")
    e(f"s_add_u32 s90, s90, {Y2_OFF}")
    e("s_lshl_b32 s92, s2, 3")
    e(f"s_add_u32 s92, s92, {ML_OFF}")
    e("s_mul_i32 s93, s2, 2560")
    e("s_waitcnt lgkmcnt(0)")
    srd(SX, 16, 17, 2560)
    e("s_lshl_b32 s7, s5, 5")
    e("s_add_u32 s7, s7, s3")
    e("s_lshl_b32 s7, s7, 20")
    e("s_lshl_b32 s8, s6, 18")
    e("s_add_u32 s7, s7, s8")
    e("s_add_u32 s10, s18, s7"); e("s_addc_u32 s11, s19, 0")
    srd(SK, 10, 11, 262144)
    e("s_add_u32 s10, s20, s7"); e("s_addc_u32 s11, s21, 0")
    srd(SV, 10, 11, 262144)
    e("s_lshl_b32 s7, s3, 8")
    e("s_add_u32 s10, s22, s7"); e("s_addc_u32 s11, s23, 0")
    e(f"s_sub_u32 s8, {640*8192}, s7")
    srd(SWQ, 10, 11, "s8")
    e("s_mul_i32 s7, s3, 163840")
    e("s_add_u32 s10, s24, s7"); e("s_addc_u32 s11, s25, 0")
    e(f"s_sub_u32 s8, {4096*1280}, s7")
    srd(SWO, 10, 11, "s8")
    srd(SW1, 28, 29, 640*3456)
    srd(SW2, 30, 31, 1728*1280)
    srd(SWS, 32, 33, 8 << 20)
    srd(12, 34, 35, 256)
    e("s_cmp_lt_u32 s2, 108")
    e("s_cbranch_scc1 Lk1_ffn")
    k1_body(False)
    lab("Lk1_ffn")
    k1_body(True)
    lab("Lk1_end")
    e("s_endpgm")

def k2():
    W, RA, RB = 0, 512, 1536
    lab(f"{NAME}_k2_kernel")
    e("s_cmp_ge_u32 s2, 40")
    e("s_cbranch_scc1 Lk2_end")
    e("s_load_dwordx2 s[16:17], s[0:1], 0")
    e("s_load_dwordx2 s[18:19], s[0:1], 64")
    e("s_load_dwordx2 s[20:21], s[0:1], 72")
    e("s_load_dwordx2 s[22:23], s[0:1], 88")
    e("s_cmp_ge_u32 s2, 20")
    e("s_cselect_b32 s3, 1, 0")
    e("s_mul_i32 s4, s3, 20")
    e("s_sub_u32 s4, s2, s4")
    e("s_waitcnt lgkmcnt(0)")
    srd(36, 16, 17, 2560)
    srd(40, 18, 19, 1280)
    srd(44, 20, 21, 2560)
    srd(48, 22, 23, 2 << 20)
    e(f"s_add_u32 s24, s22, {Y2_OFF}"); e("s_addc_u32 s25, s23, 0")
    srd(52, 24, 25, 108*5120)
    e("v_lshrrev_b32 v1, 5, v0")
    e("v_and_b32 v2, 31, v0")
    e("v_and_b32 v3, 127, v0")
    e("v_lshrrev_b32 v4, 2, v3")
    e("v_and_b32 v5, 3, v3")
    e("v_lshl_add_u32 v4, v5, 6, v4")
    e("s_lshl_b32 s5, s3, 5")
    e("v_add_u32 v4, s5, v4")
    e("v_lshlrev_b32 v4, 3, v4")
    e(f"v_add_u32 v4, {ML_OFF}, v4")
    e("buffer_load_dwordx2 v[6:7], v4, s[48:51], 0 offen")
    e("v_lshrrev_b32 v4, 2, v1")
    e("v_and_b32 v5, 3, v1")
    e("v_lshl_add_u32 v4, v5, 6, v4")
    e("v_add_u32 v4, s5, v4")
    e("v_mov_b32 v5, 2560")
    e("v_mul_u32_u24 v4, v4, v5")
    e("s_lshl_b32 s6, s4, 7")
    e("v_lshl_add_u32 v4, v2, 2, v4")
    e("v_add_u32 v4, s6, v4")
    for i in range(16):
        e(f"buffer_load_dword v{16+i}, v4, s[48:51], 0 offen")
        if i < 15: e("v_add_u32 v4, 5120, v4")
    e("v_lshlrev_b32 v4, 1, v1")
    e("v_add_u32 v4, s3, v4")
    e("v_mul_u32_u24 v4, v4, v5")
    e("v_lshl_add_u32 v4, v2, 2, v4")
    e("v_add_u32 v4, s6, v4")
    for i in range(14):
        e(f"buffer_load_dword v{32+i}, v4, s[52:55], 0 offen")
        if i < 13: e("v_add_u32 v4, 40960, v4")
    e("v_and_b32 v4, 63, v0")
    e("v_mul_u32_u24 v4, 20, v4")
    e("s_mul_i32 s7, s3, 1280")
    e("v_add_u32 v5, s7, v4")
    e("buffer_load_dwordx4 v[48:51], v5, s[36:39], 0 offen")
    e("buffer_load_dword v52, v5, s[36:39], 0 offen offset:16")
    e("buffer_load_dwordx4 v[56:59], v4, s[40:43], 0 offen")
    e("buffer_load_dword v60, v4, s[40:43], 0 offen offset:16")
    e("s_waitcnt vmcnt(34)")
    e("v_mov_b32 v8, v6")
    nop(2)
    e("v_max_f32_dpp v8, v8, v8 quad_perm:[1,0,3,2] row_mask:0xf bank_mask:0xf")
    nop(2)
    e("v_max_f32_dpp v8, v8, v8 quad_perm:[2,3,0,1] row_mask:0xf bank_mask:0xf")
    e("v_sub_f32 v9, v6, v8")
    e(f"v_mul_f32 v9, {LOG2E:#x}, v9")
    e("v_exp_f32 v9, v9")
    nop(1)
    e("v_mul_f32 v10, v9, v7")
    nop(2)
    e("v_add_f32_dpp v10, v10, v10 quad_perm:[1,0,3,2] row_mask:0xf bank_mask:0xf")
    nop(2)
    e("v_add_f32_dpp v10, v10, v10 quad_perm:[2,3,0,1] row_mask:0xf bank_mask:0xf")
    e("v_rcp_f32 v10, v10")
    nop(1)
    e("v_mul_f32 v9, v9, v10")
    e("v_lshlrev_b32 v4, 2, v3")
    e(f"ds_write_b32 v4, v9 offset:{W}")
    e("s_waitcnt lgkmcnt(0)")
    e("s_barrier")
    e("v_lshlrev_b32 v4, 2, v1")
    for i in range(16): e(f"ds_read_b32 v{64+i}, v4 offset:{W+32*i}")
    e("s_waitcnt lgkmcnt(0)")
    e("s_waitcnt vmcnt(18)")
    e("v_mul_f32 v8, v16, v64")
    for i in range(1, 16): e(f"v_fmac_f32 v8, v{16+i}, v{64+i}")
    e("s_waitcnt vmcnt(4)")
    e("v_add_f32 v9, v32, v33")
    for i in range(2, 14): e(f"v_add_f32 v9, v9, v{32+i}")
    e("v_lshlrev_b32 v4, 2, v0")
    e(f"ds_write_b32 v4, v8 offset:{RA}")
    e(f"ds_write_b32 v4, v9 offset:{RB}")
    e("s_waitcnt vmcnt(0)")
    e("v_mov_b32 v10, 0")
    for j in range(5):
        e(f"v_lshlrev_b32 v11, 16, v{48+j}")
        e(f"v_lshlrev_b32 v12, 16, v{56+j}")
        e("v_mul_f32 v11, v11, v12")
        e(f"v_and_b32 v12, 0xffff0000, v{48+j}")
        e(f"v_and_b32 v13, 0xffff0000, v{56+j}")
        e("v_mul_f32 v12, v12, v13")
        e("v_cvt_pk_bf16_f32 v11, v11, v12")
        e("v_lshlrev_b32 v12, 16, v11")
        e("v_and_b32 v11, 0xffff0000, v11")
        e("v_add_f32 v10, v10, v12")
        e("v_add_f32 v10, v10, v11")
    for rr in (8, 4, 2, 1):
        nop(2)
        e(f"v_add_f32_dpp v10, v10, v10 row_ror:{rr} row_mask:0xf bank_mask:0xf")
    allreduce_g([10], [11])
    e("v_cvt_pk_bf16_f32 v10, v10, v10")
    e("v_lshlrev_b32 v10, 16, v10")
    e("v_mul_f32 v10, 0xbfb8aa3b, v10")
    e("v_exp_f32 v10, v10")
    nop(1)
    e("v_add_f32 v10, 1.0, v10")
    e("v_rcp_f32 v10, v10")
    nop(1)
    e("v_cvt_pk_bf16_f32 v10, v10, v10")
    e("v_lshlrev_b32 v10, 16, v10")
    e("v_sub_f32 v11, 1.0, v10")
    e("v_cvt_pk_bf16_f32 v11, v11, v11")
    e("v_lshlrev_b32 v11, 16, v11")
    e("s_waitcnt lgkmcnt(0)")
    e("s_barrier")
    e("v_lshlrev_b32 v4, 2, v2")
    for r in range(8):
        e(f"ds_read_b32 v{16+r}, v4 offset:{RA+128*r}")
        e(f"ds_read_b32 v{32+r}, v4 offset:{RB+128*r}")
    e("s_waitcnt lgkmcnt(0)")
    for r in range(1, 8):
        e(f"v_add_f32 v16, v16, v{16+r}")
        e(f"v_add_f32 v32, v32, v{32+r}")
    e("v_cvt_pk_bf16_f32 v16, v16, v32")
    e("v_lshlrev_b32 v17, 16, v16")
    e("v_and_b32 v18, 0xffff0000, v16")
    e("v_mul_f32 v17, v10, v17")
    e("v_mul_f32 v18, v11, v18")
    e("v_cvt_pk_bf16_f32 v16, v17, v18")
    e("v_lshlrev_b32 v17, 16, v16")
    e("v_and_b32 v18, 0xffff0000, v16")
    e("v_add_f32 v17, v17, v18")
    e("v_cvt_pk_bf16_f32 v17, v17, v17")
    e("v_cmp_gt_u32 vcc, 32, v0")
    e("s_and_saveexec_b64 s[8:9], vcc")
    e("s_cbranch_execz Lk2_end")
    e("v_lshlrev_b32 v4, 1, v2")
    e("s_lshl_b32 s6, s4, 6")
    e("v_add_u32 v4, s6, v4")
    e("v_add_u32 v4, s7, v4")
    e("buffer_store_short v17, v4, s[44:47], 0 offen")
    lab("Lk2_end")
    e("s_endpgm")

hdr = open(f"cdna_kernels/{NAME}.s.ref").read().split("; Override launch")[0]
o = [hdr.rstrip("\n")]
o.append(f"; @launch kernel={NAME}_k1_kernel grid=(256,1,1) block=(1024,1,1) lds={LDS1}")
o.append(f"; @launch kernel={NAME}_k2_kernel grid=(40,1,1) block=(256,1,1) lds=4096")
o.append('.amdgcn_target "amdgcn-amd-amdhsa--gfx950"')
o.append(".text")
for k in ("k1", "k2"):
    o.append(f".globl {NAME}_{k}_kernel")
    o.append(f".type {NAME}_{k}_kernel,@function")
o.append(".p2align 8")
k1()
out.append(".p2align 8")
k2()
o += out
o.append('.section .rodata,"a"')
for k, nv in (("k1", 128), ("k2", 96)):
    o.append(".p2align 6")
    o.append(f".amdhsa_kernel {NAME}_{k}_kernel")
    o.append(f"  .amdhsa_next_free_vgpr {nv}")
    o.append("  .amdhsa_next_free_sgpr 100")
    o.append(f"  .amdhsa_accum_offset {nv}")
    o.append("  .amdhsa_group_segment_fixed_size 0")
    o.append("  .amdhsa_kernarg_size 96")
    o.append("  .amdhsa_user_sgpr_count 2")
    o.append("  .amdhsa_user_sgpr_kernarg_segment_ptr 1")
    o.append("  .amdhsa_system_sgpr_workgroup_id_x 1")
    o.append(".end_amdhsa_kernel")
open(sys.argv[1], "w").write("\n".join(o) + "\n")
```

```python
import sys
NAME = "gated_mix__mha_block_cached__dense_activation_silu__decode"
OPT = sys.argv[2] if len(sys.argv) > 2 else "nt,D8"
NT = " nt" if 'nt' in OPT else ""
import re as _re
DEPTH = int(_re.search(r"D(\d+)", OPT).group(1))
out = []
def e(s): out.append("    " + s)
def lab(s): out.append(s + ":")
def nop(n): e(f"s_nop {n-1}")

XS, QP, QB, HP, HS, MS, LP, OS, OP, YP = 0, 8192, 16384, 16640, 18688, 18816, 19072, 19200, 20480, 28672
LDS1 = 28672 + 13 * 2560
Y_OFF, ML_OFF, Y2_OFF = 0, 1 << 20, 2 << 20
LOG2E = 0x3fb8aa3b
SCALE = 0x3db504f3

STAMP = 'stamp' in OPT
DBGM = 'dbg' in OPT
dbg_n = [0]
def dstamp():
    if not DBGM: return
    k = dbg_n[0]; dbg_n[0] += 1
    e('s_memrealtime s[94:95]'); e('s_waitcnt lgkmcnt(0)'); e(f's_mov_b32 s{96+k}, s94')

stamp_n = [0]
def stamp():
    if not STAMP: return
    k = stamp_n[0]; stamp_n[0] += 1
    e(f"s_memrealtime s[{94}:{95}]")
    e("s_waitcnt lgkmcnt(0)")
    e(f"v_writelane_b32 v126, s94, {k}")
class VM:
    def __init__(s): s.l = []
    def issue(s, tag): s.l.append(tag)
    def wait(s, tag):
        n = len(s.l) - 1 - s.l.index(tag)
        e(f"s_waitcnt vmcnt({n})")

def allreduce_g(regs, tmp, op="v_add_f32"):
    for r, t in zip(regs, tmp): e(f"v_mov_b32 v{t}, v{r}")
    nop(2)
    for r, t in zip(regs, tmp): e(f"v_permlane16_swap_b32 v{r}, v{t}")
    for r, t in zip(regs, tmp): e(f"{op} v{r}, v{r}, v{t}")
    for r, t in zip(regs, tmp): e(f"v_mov_b32 v{t}, v{r}")
    nop(2)
    for r, t in zip(regs, tmp): e(f"v_permlane32_swap_b32 v{r}, v{t}")
    for r, t in zip(regs, tmp): e(f"{op} v{r}, v{r}, v{t}")

def srd(d, lo, hi, nrec):
    e(f"s_mov_b32 s{d}, s{lo}")
    e(f"s_and_b32 s{d+1}, s{hi}, 0xffff")
    e(f"s_mov_b32 s{d+2}, {nrec}")
    e(f"s_mov_b32 s{d+3}, 0x00020000")

SX, SK, SV, SWQ, SWO, SW1, SW2, SWS = 36, 40, 44, 48, 52, 56, 60, 64

def k1_body(ffn):
    vm = VM()
    stamp_n[0] = 0
    stamp()
    dbg_n[0] = 0
    dstamp()
    D = DEPTH
    D = 16
    WIN = [24 + 4*i for i in range(16)]
    WQ = [88 + 4*i for i in range(10)]
    KR = [WIN[i] for i in range(16)]
    VR = [WIN[i] for i in range(16)]
    WO = [WIN[i] for i in range(11)]
    S = [88 + i for i in range(16)]
    ACC = [104 + i for i in range(8)]
    W1 = [64 + i for i in range(5)]
    W2 = [69 + i for i in range(16)]
    K0N = 10
    Q = [4, 5, 6, 7]
    e("v_lshlrev_b32 v2, 1, v0")
    e(f"buffer_load_ushort v16, v2, s[{SX}:{SX+3}], 0 offen"); vm.issue('x0')
    e(f"buffer_load_ushort v17, v2, s[{SX}:{SX+3}], 0 offen offset:1280"); vm.issue('x1')
    e("v_bfe_u32 v8, v0, 4, 2")
    e("v_and_b32 v9, 15, v0")
    e("v_mul_u32_u24 v3, 10, v8")
    e("v_add_u32 v3, s70, v3")
    e("v_lshlrev_b32 v3, 13, v3")
    e("v_lshl_add_u32 v3, v9, 4, v3")
    for i in range(10):
        e(f"buffer_load_dwordx4 v[{WQ[i]}:{WQ[i]+3}], v3, s[{SWQ}:{SWQ+3}], s{80+i} offen"); vm.issue(f'wq{i}')
    if ffn:
        e("v_lshrrev_b32 v10, 3, v0")
        e("v_mul_u32_u24 v10, 5, v10")
        e("v_mov_b32 v11, 3456")
        e("v_mul_u32_u24 v10, v10, v11")
        e("v_and_b32 v11, 7, v0")
        e("v_lshl_add_u32 v10, v11, 2, v10")
        e("v_add_u32 v10, s71, v10")
        for i in range(5):
            e(f"buffer_load_dword v{W1[i]}, v10, s[{SW1}:{SW1+3}], 0 offen"); vm.issue(f'w1{i}')
            if i < 4: e("v_add_u32 v10, 3456, v10")
        e("v_lshlrev_b32 v10, 2, v0")
        e("v_add_u32 v10, s72, v10")
        for r in range(16):
            e(f"buffer_load_dword v{W2[r]}, v10, s[{SW2}:{SW2+3}], 0 offen"); vm.issue(f'w2{r}')
            if r < 15: e("v_add_u32 v10, 1280, v10")
    stamp()
    e("s_barrier")
    stamp()
    e("v_lshlrev_b32 v1, 8, v8")
    e("v_add_u32 v1, s73, v1")
    e("v_lshl_add_u32 v1, v9, 4, v1")
    def kv_load(reg, srdb, i, tag):
        so = ["0", "s74", "s75", "s76"][i // 4]
        e(f"buffer_load_dwordx4 v[{reg}:{reg+3}], v1, s[{srdb}:{srdb+3}], {so} offen offset:{(i%4)*1024}{NT}"); vm.issue(tag)
    def stream(n):
        if n < 16: kv_load(KR[n], SK, n, f'k{n}')
        elif n < 32: kv_load(VR[n-16], SV, n-16, f'v{n-16}')
    KPRE = int(_re.search(r'KP(\d+)', OPT).group(1)) if 'KP' in OPT else K0N
    for i in range(KPRE): stream(i)
    vm.wait('x1')
    stamp()
    e("v_lshlrev_b32 v16, 16, v16")
    e("v_lshlrev_b32 v17, 16, v17")
    e("v_lshlrev_b32 v2, 2, v0")
    e(f"ds_write_b32 v2, v16 offset:{XS}")
    e(f"ds_write_b32 v2, v17 offset:{XS+4096}")
    e("s_waitcnt lgkmcnt(0)")
    e("s_barrier")
    stamp()
    e("v_mul_u32_u24 v2, 10, v8")
    e("v_add_u32 v2, s70, v2")
    e("v_lshlrev_b32 v2, 2, v2")
    e("v_add_u32 v2, s77, v2")
    QA = [8+i for i in range(8)]
    e("v_mov_b32 v22, v8")
    e("v_mov_b32 v23, v9")
    for a in QA: e(f"v_mov_b32 v{a}, 0")
    for half in range(2):
        for k in range(3):
            pass
        e(f"ds_read_b64 v[16:17], v2 offset:{XS+half*20}")
        e(f"ds_read_b64 v[18:19], v2 offset:{XS+half*20+8}")
        e(f"ds_read_b32 v20, v2 offset:{XS+half*20+16}")
        e("s_waitcnt lgkmcnt(0)")
        for ii in range(5):
            i = half*5 + ii
            vm.wait(f'wq{i}')
            if i in (0, 9): stamp()
            for j in range(4):
                w = WQ[i] + j
                e(f"v_lshlrev_b32 v21, 16, v{w}")
                e(f"v_and_b32 v3, 0xffff0000, v{w}")
                e(f"v_fmac_f32 v{QA[2*j]}, v{16+ii}, v21")
                e(f"v_fmac_f32 v{QA[2*j+1]}, v{16+ii}, v3")
    allreduce_g(QA, [16+i for i in range(6)] + [2, 3])
    e("v_lshlrev_b32 v2, 5, v23")
    e("v_add_u32 v2, s78, v2")
    e(f"ds_write_b128 v2, v[8:11] offset:{QP}")
    e(f"ds_write_b128 v2, v[12:15] offset:{QP+16}")
    if ffn:
        e("v_lshrrev_b32 v2, 3, v0")
        e("v_mul_u32_u24 v2, 20, v2")
        for i in range(5):
            e(f"ds_read_b32 v{8+i}, v2 offset:{XS+4*i}")
            e(f"ds_read_b32 v{13+i}, v2 offset:{XS+4096+4*i}")
        for a in (18, 19, 20, 21): e(f"v_mov_b32 v{a}, 0")
        e("s_waitcnt lgkmcnt(0)")
        vm.wait('w14')
        for i in range(5):
            e(f"v_lshlrev_b32 v2, 16, v{W1[i]}")
            e(f"v_and_b32 v3, 0xffff0000, v{W1[i]}")
            e(f"v_fmac_f32 v18, v{8+i}, v2")
            e(f"v_fmac_f32 v19, v{8+i}, v3")
            e(f"v_fmac_f32 v20, v{13+i}, v2")
            e(f"v_fmac_f32 v21, v{13+i}, v3")
        nop(2)
        for a in (18, 19, 20, 21):
            e(f"v_add_f32_dpp v{a}, v{a}, v{a} row_ror:8 row_mask:0xf bank_mask:0xf")
        allreduce_g([18, 19, 20, 21], [8, 9, 10, 11])
        e("v_and_b32 v2, 7, v0")
        e("v_lshlrev_b32 v2, 3, v2")
        e("v_add_u32 v2, s79, v2")
        e(f"ds_write_b64 v2, v[18:19] offset:{HP}")
        e(f"ds_write_b64 v2, v[20:21] offset:{HP+64}")
    for i in range(KPRE, K0N): stream(i)
    e("s_waitcnt lgkmcnt(0)")
    e("s_barrier")
    stamp()
    L = f"Lq{int(ffn)}"
    e("s_cmp_ge_u32 s69, 2")
    e(f"s_cbranch_scc1 {L}_a")
    e("v_lshlrev_b32 v2, 2, v0")
    for w in range(16):
        e(f"ds_read_b32 v{8+w}, v2 offset:{QP+512*w}") if w < 14 else None
    e("s_waitcnt lgkmcnt(0)")
    for w in range(1, 14): e(f"v_add_f32 v8, v8, v{8+w}")
    e(f"ds_read_b32 v9, v2 offset:{QP+512*14}")
    e(f"ds_read_b32 v10, v2 offset:{QP+512*15}")
    e("s_waitcnt lgkmcnt(0)")
    e("v_add_f32 v8, v8, v9")
    e("v_add_f32 v8, v8, v10")
    e("v_cvt_pk_bf16_f32 v8, v8, v8")
    e("v_lshlrev_b32 v2, 1, v0")
    e(f"ds_write_b16 v2, v8 offset:{QB}")
    e(f"s_branch {L}_b")
    lab(f"{L}_a")
    if ffn:
        e("s_cmp_lg_u32 s69, 2")
        e(f"s_cbranch_scc1 {L}_b")
        e("v_and_b32 v2, 31, v0")
        e("v_lshlrev_b32 v2, 2, v2")
        for w in range(14): e(f"ds_read_b32 v{8+w}, v2 offset:{HP+128*w}")
        e("s_waitcnt lgkmcnt(0)")
        for w in range(1, 14): e(f"v_add_f32 v8, v8, v{8+w}")
        e(f"ds_read_b32 v9, v2 offset:{HP+128*14}")
        e(f"ds_read_b32 v10, v2 offset:{HP+128*15}")
        e("s_waitcnt lgkmcnt(0)")
        e("v_add_f32 v8, v8, v9")
        e("v_add_f32 v8, v8, v10")
        e("v_cvt_pk_bf16_f32 v8, v8, v8")
        e("v_lshlrev_b32 v8, 16, v8")
        e(f"v_mul_f32 v9, 0xbfb8aa3b, v8")
        e("v_exp_f32 v9, v9")
        nop(1)
        e("v_add_f32 v9, 1.0, v9")
        e("v_rcp_f32 v9, v9")
        nop(1)
        e("v_mul_f32 v8, v8, v9")
        e("v_cvt_pk_bf16_f32 v8, v8, v8")
        e("v_lshlrev_b32 v8, 16, v8")
        e(f"ds_write_b32 v2, v8 offset:{HS}")
    lab(f"{L}_b")
    e("s_waitcnt lgkmcnt(0)")
    e("s_barrier")
    stamp()
    dstamp()
    e("v_lshlrev_b32 v2, 4, v23")
    e(f"ds_read_b128 v[4:7], v2 offset:{QB}")
    if ffn:
        e("v_mov_b32 v2, 0")
        for r in range(4):
            e(f"ds_read_b128 v[{8+4*r}:{11+4*r}], v2 offset:{HS+16*r}")
        e("s_waitcnt lgkmcnt(0)")
        vm.wait('w215')
        for a in (122, 123, 124, 125): e(f"v_mov_b32 v{a}, 0")
        for r in range(16):
            e(f"v_lshlrev_b32 v2, 16, v{W2[r]}")
            e(f"v_and_b32 v3, 0xffff0000, v{W2[r]}")
            e(f"v_fmac_f32 v122, v{8+r}, v2")
            e(f"v_fmac_f32 v123, v{8+r}, v3")
        e("v_mov_b32 v2, 0")
        for r in range(4):
            e(f"ds_read_b128 v[{8+4*r}:{11+4*r}], v2 offset:{HS+64+16*r}")
        e("s_waitcnt lgkmcnt(0)")
        for r in range(16):
            e(f"v_lshlrev_b32 v2, 16, v{W2[r]}")
            e(f"v_and_b32 v3, 0xffff0000, v{W2[r]}")
            e(f"v_fmac_f32 v124, v{8+r}, v2")
            e(f"v_fmac_f32 v125, v{8+r}, v3")
        e("s_cmp_ge_u32 s69, 5")
        e(f"s_cbranch_scc1 Ly2skip")
        e("v_lshlrev_b32 v2, 3, v0")
        e("v_add_u32 v2, s90, v2")
        e(f"buffer_store_dwordx2 v[122:123], v2, s[{SWS}:{SWS+3}], 0 offen")
        e(f"buffer_store_dwordx2 v[124:125], v2, s[{SWS}:{SWS+3}], 0 offen offset:2560")
        lab("Ly2skip")
        nop(2)
    e("s_waitcnt lgkmcnt(0)")
    for i in range(K0N, 16): stream(i)
    stamp()
    for i in range(16):
        vm.wait(f'k{i}')
        for j in range(4):
            src2 = "0" if j == 0 else f"v{S[i]}"
            e(f"v_dot2_f32_bf16 v{S[i]}, v{KR[i]+j}, v{Q[j]}, {src2}")
        stream(i + D)
    nop(3)
    for rr in (8, 4, 2, 1):
        for i in range(16): e(f"v_add_f32_dpp v{S[i]}, v{S[i]}, v{S[i]} row_ror:{rr} row_mask:0xf bank_mask:0xf")
    stamp()
    e("v_mov_b32 v3, 52429")
    e("v_mul_u32_u24 v2, v0, v3")
    e("v_lshrrev_b32 v22, 22, v2")
    e("v_mul_u32_u24 v3, 80, v22")
    e("v_sub_u32 v23, v0, v3")
    e("v_mov_b32 v3, 1280")
    e("v_mul_u32_u24 v21, v22, v3")
    e("v_lshl_add_u32 v21, v23, 4, v21")
    def wo_load(i):
        e(f"v_add_u32 v2, {i*15360}, v21")
        e(f"buffer_load_dwordx4 v[{WO[i]}:{WO[i]+3}], v2, s[{SWO}:{SWO+3}], 0 offen"); vm.issue(f'wo{i}')
    for rep in range(2):
        for i in range(0, 16, 2):
            e(f"v_cvt_pk_bf16_f32 v2, v{S[i]}, v{S[i+1]}")
            e(f"v_lshlrev_b32 v{S[i]}, 16, v2")
            e(f"v_and_b32 v{S[i+1]}, 0xffff0000, v2")
        if rep == 0:
            for i in range(16): e(f"v_mul_f32 v{S[i]}, {SCALE:#x}, v{S[i]}")
    e(f"v_max3_f32 v16, v{S[0]}, v{S[1]}, v{S[2]}")
    for i in range(3, 15, 2): e(f"v_max3_f32 v16, v16, v{S[i]}, v{S[i+1]}")
    e(f"v_max_f32 v16, v16, v{S[15]}")
    e(f"v_mul_f32 v17, 0xbfb8aa3b, v16")
    e(f"s_mov_b32 s91, {LOG2E:#x}")
    for i in range(16): e(f"v_fma_f32 v{S[i]}, v{S[i]}, s91, v17")
    for i in range(16): e(f"v_exp_f32 v{S[i]}, v{S[i]}")
    nop(1)
    e(f"v_add_f32 v18, v{S[0]}, v{S[1]}")
    for i in range(2, 16): e(f"v_add_f32 v18, v18, v{S[i]}")
    for a in ACC: e(f"v_mov_b32 v{a}, 0")
    for i in range(16):
        vm.wait(f'v{i}')
        for j in range(4):
            w = VR[i] + j
            e(f"v_lshlrev_b32 v19, 16, v{w}")
            e(f"v_and_b32 v20, 0xffff0000, v{w}")
            e(f"v_fmac_f32 v{ACC[2*j]}, v{S[i]}, v19")
            e(f"v_fmac_f32 v{ACC[2*j+1]}, v{S[i]}, v20")
        stream(16 + i + D)
        if i < 11: wo_load(i)
    stamp()
    e("v_bfe_u32 v2, v0, 4, 6")
    e("v_lshlrev_b32 v2, 2, v2")
    e(f"ds_write_b32 v2, v16 offset:{MS}")
    e("s_waitcnt lgkmcnt(0)")
    e("s_barrier")
    stamp()
    dstamp()
    e("v_and_b32 v2, 63, v0")
    e("v_lshlrev_b32 v2, 2, v2")
    e(f"ds_read_b32 v17, v2 offset:{MS}")
    e("s_waitcnt lgkmcnt(0)")
    nop(1)
    for rr in (8, 4, 2, 1):
        e(f"v_max_f32_dpp v17, v17, v17 row_ror:{rr} row_mask:0xf bank_mask:0xf")
        nop(2)
    allreduce_g([17], [19], op="v_max_f32")
    e("v_sub_f32 v19, v16, v17")
    e(f"v_mul_f32 v19, {LOG2E:#x}, v19")
    e("v_exp_f32 v19, v19")
    nop(1)
    for a in ACC + [18]: e(f"v_mul_f32 v{a}, v{a}, v19")
    allreduce_g(ACC + [18], S[:9])
    e("v_and_b32 v2, 15, v0")
    e("v_lshlrev_b32 v2, 5, v2")
    e("v_add_u32 v2, s78, v2")
    e(f"ds_write_b128 v2, v[{ACC[0]}:{ACC[3]}] offset:{OP}")
    e(f"ds_write_b128 v2, v[{ACC[4]}:{ACC[7]}] offset:{OP+16}")
    e("v_mov_b32 v2, s69")
    e("v_lshlrev_b32 v2, 2, v2")
    e(f"ds_write_b32 v2, v18 offset:{LP}")
    e("s_waitcnt lgkmcnt(0)")
    e("s_barrier")
    L = f"Lo{int(ffn)}"
    e("s_cmp_ge_u32 s69, 2")
    e(f"s_cbranch_scc1 {L}_a")
    e("v_lshlrev_b32 v2, 2, v0")
    for w in range(16): e(f"ds_read_b32 v{88+w}, v2 offset:{OP+512*w}")
    e("s_waitcnt lgkmcnt(0)")
    for w in range(1, 16): e(f"v_add_f32 v88, v88, v{88+w}")
    e(f"ds_write_b32 v2, v88 offset:{OS}")
    e(f"s_branch {L}_b")
    lab(f"{L}_a")
    e("s_cmp_lg_u32 s69, 2")
    e(f"s_cbranch_scc1 {L}_c")
    e("v_lshlrev_b32 v2, 2, v0")
    e("v_mov_b32 v3, 0")
    e(f"ds_write_b32 v2, v3 offset:{OS}")
    e(f"s_branch {L}_b")
    lab(f"{L}_c")
    e("s_cmp_lg_u32 s69, 3")
    e(f"s_cbranch_scc1 {L}_b")
    e("v_mov_b32 v2, 0")
    for r in range(4): e(f"ds_read_b128 v[{88+4*r}:{91+4*r}], v2 offset:{LP+16*r}")
    e("s_waitcnt lgkmcnt(0)")
    for w in range(1, 16): e(f"v_add_f32 v88, v88, v{88+w}")
    e("v_mov_b32 v89, v88")
    e("v_mov_b32 v88, v17")
    e("v_mov_b32 v2, s92")
    e(f"buffer_store_dwordx2 v[88:89], v2, s[{SWS}:{SWS+3}], 0 offen")
    lab(f"{L}_b")
    e("s_waitcnt lgkmcnt(0)")
    e("s_barrier")
    stamp()
    e("v_lshlrev_b32 v2, 2, v22")
    for i in range(11): e(f"ds_read_b32 v{88+i}, v2 offset:{OS+48*i}")
    for a in ACC: e(f"v_mov_b32 v{a}, 0")
    e("s_waitcnt lgkmcnt(0)")
    for i in range(11):
        vm.wait(f'wo{i}')
        for j in range(4):
            w = WO[i] + j
            e(f"v_lshlrev_b32 v19, 16, v{w}")
            e(f"v_and_b32 v20, 0xffff0000, v{w}")
            e(f"v_fmac_f32 v{ACC[2*j]}, v{88+i}, v19")
            e(f"v_fmac_f32 v{ACC[2*j+1]}, v{88+i}, v20")
    e("v_mov_b32 v3, 2560")
    e("v_mul_u32_u24 v2, v22, v3")
    e("v_lshl_add_u32 v2, v23, 5, v2")
    e(f"ds_write_b128 v2, v[{ACC[0]}:{ACC[3]}] offset:{YP}")
    e(f"ds_write_b128 v2, v[{ACC[4]}:{ACC[7]}] offset:{YP+16}")
    e("s_waitcnt lgkmcnt(0)")
    e("s_barrier")
    stamp()
    dstamp()
    if DBGM:
        for k in range(4): e(f"v_mov_b32 v{120+k}, s{96+k}")
        e("s_lshl_b32 s94, s2, 4"); e(f"s_add_u32 s94, s94, {5<<20}"); e("v_mov_b32 v124, s94")
        e("s_cmp_lg_u32 s69, 0"); e(f"s_cbranch_scc1 Ldbgs{int(ffn)}")
        e(f"buffer_store_dwordx4 v[120:123], v124, s[{SWS}:{SWS+3}], 0 offen")
        lab(f"Ldbgs{int(ffn)}")
    if STAMP:
        e("s_lshl_b32 s94, s2, 4")
        e("s_add_u32 s94, s94, s69")
        e("s_lshl_b32 s94, s94, 8")
        e(f"s_add_u32 s94, s94, {3<<20}")
        e("v_and_b32 v2, 63, v0")
        e("v_lshlrev_b32 v2, 2, v2")
        e("v_add_u32 v2, s94, v2")
        e(f"buffer_store_dword v126, v2, s[{SWS}:{SWS+3}], 0 offen")
    e("s_cmp_ge_u32 s69, 10")
    e("s_cbranch_scc1 Lk1_end")
    e("v_lshlrev_b32 v2, 2, v0")
    for gq in range(12): e(f"ds_read_b32 v{88+gq}, v2 offset:{YP+2560*gq}")
    e("s_waitcnt lgkmcnt(0)")
    for gq in range(1, 12): e(f"v_add_f32 v88, v88, v{88+gq}")
    e("v_add_u32 v2, s93, v2")
    e(f"buffer_store_dword v88, v2, s[{SWS}:{SWS+3}], 0 offen")
    e("s_branch Lk1_end")

def k1():
    lab(f"{NAME}_k1_kernel")
    e("s_cmp_ge_u32 s2, 256")
    e("s_cbranch_scc1 Lk1_end")
    e("s_load_dwordx16 s[16:31], s[0:1], 0")
    e("s_load_dwordx2 s[32:33], s[0:1], 88")
    e("v_lshrrev_b32 v2, 6, v0")
    nop(1)
    e("v_readfirstlane_b32 s69, v2")
    e("s_and_b32 s3, s2, 31")
    e("s_lshr_b32 s4, s2, 5")
    e("s_and_b32 s5, s4, 1")
    e("s_lshr_b32 s6, s4, 1")
    e("s_mul_i32 s70, s69, 40")
    e("s_lshl_b32 s71, s2, 5")
    e("s_mul_i32 s72, s2, 20480")
    e("s_lshl_b32 s73, s69, 14")
    e("s_mov_b32 s74, 4096"); e("s_mov_b32 s75, 8192"); e("s_mov_b32 s76, 12288")
    e("s_lshl_b32 s77, s5, 12")
    e("s_lshl_b32 s78, s69, 9")
    e("s_lshl_b32 s79, s69, 7")
    for i in range(10): e(f"s_mov_b32 s{80+i}, {i*8192}")
    e("s_mul_i32 s90, s2, 5120")
    e(f"s_add_u32 s90, s90, {Y2_OFF}")
    e("s_lshl_b32 s92, s2, 3")
    e(f"s_add_u32 s92, s92, {ML_OFF}")
    e("s_mul_i32 s93, s2, 2560")
    e("s_waitcnt lgkmcnt(0)")
    srd(SX, 16, 17, 2560)
    e("s_lshl_b32 s7, s5, 5")
    e("s_add_u32 s7, s7, s3")
    e("s_lshl_b32 s7, s7, 20")
    e("s_lshl_b32 s8, s6, 18")
    e("s_add_u32 s7, s7, s8")
    e("s_add_u32 s10, s18, s7"); e("s_addc_u32 s11, s19, 0")
    srd(SK, 10, 11, 262144)
    e("s_add_u32 s10, s20, s7"); e("s_addc_u32 s11, s21, 0")
    srd(SV, 10, 11, 262144)
    e("s_lshl_b32 s7, s3, 8")
    e("s_add_u32 s10, s22, s7"); e("s_addc_u32 s11, s23, 0")
    e(f"s_sub_u32 s8, {640*8192}, s7")
    srd(SWQ, 10, 11, "s8")
    e("s_mul_i32 s7, s3, 163840")
    e("s_add_u32 s10, s24, s7"); e("s_addc_u32 s11, s25, 0")
    e(f"s_sub_u32 s8, {4096*1280}, s7")
    srd(SWO, 10, 11, "s8")
    srd(SW1, 28, 29, 640*3456)
    srd(SW2, 30, 31, 1728*1280)
    srd(SWS, 32, 33, 8 << 20)
    e("s_cmp_lt_u32 s2, 108")
    e("s_cbranch_scc1 Lk1_ffn")
    k1_body(False)
    lab("Lk1_ffn")
    k1_body(True)
    lab("Lk1_end")
    e("s_endpgm")

def k2():
    W, RA, RB = 0, 512, 1536
    lab(f"{NAME}_k2_kernel")
    e("s_cmp_ge_u32 s2, 40")
    e("s_cbranch_scc1 Lk2_end")
    e("s_load_dwordx2 s[16:17], s[0:1], 0")
    e("s_load_dwordx2 s[18:19], s[0:1], 64")
    e("s_load_dwordx2 s[20:21], s[0:1], 72")
    e("s_load_dwordx2 s[22:23], s[0:1], 88")
    e("s_cmp_ge_u32 s2, 20")
    e("s_cselect_b32 s3, 1, 0")
    e("s_mul_i32 s4, s3, 20")
    e("s_sub_u32 s4, s2, s4")
    e("s_waitcnt lgkmcnt(0)")
    srd(36, 16, 17, 2560)
    srd(40, 18, 19, 1280)
    srd(44, 20, 21, 2560)
    srd(48, 22, 23, 2 << 20)
    e(f"s_add_u32 s24, s22, {Y2_OFF}"); e("s_addc_u32 s25, s23, 0")
    srd(52, 24, 25, 108*5120)
    e("v_lshrrev_b32 v1, 5, v0")
    e("v_and_b32 v2, 31, v0")
    e("v_and_b32 v3, 127, v0")
    e("v_lshrrev_b32 v4, 2, v3")
    e("v_and_b32 v5, 3, v3")
    e("v_lshl_add_u32 v4, v5, 6, v4")
    e("s_lshl_b32 s5, s3, 5")
    e("v_add_u32 v4, s5, v4")
    e("v_lshlrev_b32 v4, 3, v4")
    e(f"v_add_u32 v4, {ML_OFF}, v4")
    e("buffer_load_dwordx2 v[6:7], v4, s[48:51], 0 offen")
    e("v_lshrrev_b32 v4, 2, v1")
    e("v_and_b32 v5, 3, v1")
    e("v_lshl_add_u32 v4, v5, 6, v4")
    e("v_add_u32 v4, s5, v4")
    e("v_mov_b32 v5, 2560")
    e("v_mul_u32_u24 v4, v4, v5")
    e("s_lshl_b32 s6, s4, 7")
    e("v_lshl_add_u32 v4, v2, 2, v4")
    e("v_add_u32 v4, s6, v4")
    for i in range(16):
        e(f"buffer_load_dword v{16+i}, v4, s[48:51], 0 offen")
        if i < 15: e("v_add_u32 v4, 5120, v4")
    e("v_lshlrev_b32 v4, 1, v1")
    e("v_add_u32 v4, s3, v4")
    e("v_mul_u32_u24 v4, v4, v5")
    e("v_lshl_add_u32 v4, v2, 2, v4")
    e("v_add_u32 v4, s6, v4")
    for i in range(14):
        e(f"buffer_load_dword v{32+i}, v4, s[52:55], 0 offen")
        if i < 13: e("v_add_u32 v4, 40960, v4")
    e("v_and_b32 v4, 63, v0")
    e("v_mul_u32_u24 v4, 20, v4")
    e("s_mul_i32 s7, s3, 1280")
    e("v_add_u32 v5, s7, v4")
    e("buffer_load_dwordx4 v[48:51], v5, s[36:39], 0 offen")
    e("buffer_load_dword v52, v5, s[36:39], 0 offen offset:16")
    e("buffer_load_dwordx4 v[56:59], v4, s[40:43], 0 offen")
    e("buffer_load_dword v60, v4, s[40:43], 0 offen offset:16")
    e("s_waitcnt vmcnt(34)")
    e("v_mov_b32 v8, v6")
    nop(2)
    e("v_max_f32_dpp v8, v8, v8 quad_perm:[1,0,3,2] row_mask:0xf bank_mask:0xf")
    nop(2)
    e("v_max_f32_dpp v8, v8, v8 quad_perm:[2,3,0,1] row_mask:0xf bank_mask:0xf")
    e("v_sub_f32 v9, v6, v8")
    e(f"v_mul_f32 v9, {LOG2E:#x}, v9")
    e("v_exp_f32 v9, v9")
    nop(1)
    e("v_mul_f32 v10, v9, v7")
    nop(2)
    e("v_add_f32_dpp v10, v10, v10 quad_perm:[1,0,3,2] row_mask:0xf bank_mask:0xf")
    nop(2)
    e("v_add_f32_dpp v10, v10, v10 quad_perm:[2,3,0,1] row_mask:0xf bank_mask:0xf")
    e("v_rcp_f32 v10, v10")
    nop(1)
    e("v_mul_f32 v9, v9, v10")
    e("v_lshlrev_b32 v4, 2, v3")
    e(f"ds_write_b32 v4, v9 offset:{W}")
    e("s_waitcnt lgkmcnt(0)")
    e("s_barrier")
    e("v_lshlrev_b32 v4, 2, v1")
    for i in range(16): e(f"ds_read_b32 v{64+i}, v4 offset:{W+32*i}")
    e("s_waitcnt lgkmcnt(0)")
    e("s_waitcnt vmcnt(18)")
    e("v_mul_f32 v8, v16, v64")
    for i in range(1, 16): e(f"v_fmac_f32 v8, v{16+i}, v{64+i}")
    e("s_waitcnt vmcnt(4)")
    e("v_add_f32 v9, v32, v33")
    for i in range(2, 14): e(f"v_add_f32 v9, v9, v{32+i}")
    e("v_lshlrev_b32 v4, 2, v0")
    e(f"ds_write_b32 v4, v8 offset:{RA}")
    e(f"ds_write_b32 v4, v9 offset:{RB}")
    e("s_waitcnt vmcnt(0)")
    e("v_mov_b32 v10, 0")
    for j in range(5):
        e(f"v_lshlrev_b32 v11, 16, v{48+j}")
        e(f"v_lshlrev_b32 v12, 16, v{56+j}")
        e("v_mul_f32 v11, v11, v12")
        e(f"v_and_b32 v12, 0xffff0000, v{48+j}")
        e(f"v_and_b32 v13, 0xffff0000, v{56+j}")
        e("v_mul_f32 v12, v12, v13")
        e("v_cvt_pk_bf16_f32 v11, v11, v12")
        e("v_lshlrev_b32 v12, 16, v11")
        e("v_and_b32 v11, 0xffff0000, v11")
        e("v_add_f32 v10, v10, v12")
        e("v_add_f32 v10, v10, v11")
    for rr in (8, 4, 2, 1):
        nop(2)
        e(f"v_add_f32_dpp v10, v10, v10 row_ror:{rr} row_mask:0xf bank_mask:0xf")
    allreduce_g([10], [11])
    e("v_cvt_pk_bf16_f32 v10, v10, v10")
    e("v_lshlrev_b32 v10, 16, v10")
    e("v_mul_f32 v10, 0xbfb8aa3b, v10")
    e("v_exp_f32 v10, v10")
    nop(1)
    e("v_add_f32 v10, 1.0, v10")
    e("v_rcp_f32 v10, v10")
    nop(1)
    e("v_cvt_pk_bf16_f32 v10, v10, v10")
    e("v_lshlrev_b32 v10, 16, v10")
    e("v_sub_f32 v11, 1.0, v10")
    e("v_cvt_pk_bf16_f32 v11, v11, v11")
    e("v_lshlrev_b32 v11, 16, v11")
    e("s_waitcnt lgkmcnt(0)")
    e("s_barrier")
    e("v_lshlrev_b32 v4, 2, v2")
    for r in range(8):
        e(f"ds_read_b32 v{16+r}, v4 offset:{RA+128*r}")
        e(f"ds_read_b32 v{32+r}, v4 offset:{RB+128*r}")
    e("s_waitcnt lgkmcnt(0)")
    for r in range(1, 8):
        e(f"v_add_f32 v16, v16, v{16+r}")
        e(f"v_add_f32 v32, v32, v{32+r}")
    e("v_cvt_pk_bf16_f32 v16, v16, v32")
    e("v_lshlrev_b32 v17, 16, v16")
    e("v_and_b32 v18, 0xffff0000, v16")
    e("v_mul_f32 v17, v10, v17")
    e("v_mul_f32 v18, v11, v18")
    e("v_cvt_pk_bf16_f32 v16, v17, v18")
    e("v_lshlrev_b32 v17, 16, v16")
    e("v_and_b32 v18, 0xffff0000, v16")
    e("v_add_f32 v17, v17, v18")
    e("v_cvt_pk_bf16_f32 v17, v17, v17")
    if DBGM:
        e("s_cmp_lg_u32 s2, 0"); e("s_cbranch_scc1 Lk2dbg")
        e("s_load_dwordx2 s[26:27], s[0:1], 80"); e("s_waitcnt lgkmcnt(0)")
        srd(56, 26, 27, 256); srd(60, 22, 23, 8 << 20)
        e("v_and_b32 v24, 3, v0"); e("v_mul_u32_u24 v25, 85, v24"); e("v_lshlrev_b32 v25, 4, v25"); e(f"v_add_u32 v25, {5<<20}, v25")
        e("buffer_load_dwordx4 v[28:31], v25, s[60:63], 0 offen"); e("s_waitcnt vmcnt(0)")
        e("s_memrealtime s[28:29]"); e("s_waitcnt lgkmcnt(0)"); e("v_mov_b32 v26, s28")
        e("v_cmp_eq_u32 vcc, 3, v24"); e("s_nop 1"); e("v_cndmask_b32 v29, v29, v26, vcc")
        e("v_lshlrev_b32 v24, 4, v24")
        e("buffer_store_dwordx4 v[28:31], v24, s[56:59], 0 offen")
        lab("Lk2dbg")
    e("v_cmp_gt_u32 vcc, 32, v0")
    e("s_and_saveexec_b64 s[8:9], vcc")
    e("s_cbranch_execz Lk2_end")
    e("v_lshlrev_b32 v4, 1, v2")
    e("s_lshl_b32 s6, s4, 6")
    e("v_add_u32 v4, s6, v4")
    e("v_add_u32 v4, s7, v4")
    e("buffer_store_short v17, v4, s[44:47], 0 offen")
    lab("Lk2_end")
    e("s_endpgm")

hdr = open(f"cdna_kernels/{NAME}.s.ref").read().split("; Override launch")[0]
o = [hdr.rstrip("\n")]
o.append(f"; @launch kernel={NAME}_k1_kernel grid=(256,1,1) block=(1024,1,1) lds={LDS1}")
o.append(f"; @launch kernel={NAME}_k2_kernel grid=(40,1,1) block=(256,1,1) lds=4096")
o.append('.amdgcn_target "amdgcn-amd-amdhsa--gfx950"')
o.append(".text")
for k in ("k1", "k2"):
    o.append(f".globl {NAME}_{k}_kernel")
    o.append(f".type {NAME}_{k}_kernel,@function")
o.append(".p2align 8")
k1()
out.append(".p2align 8")
k2()
o += out
o.append('.section .rodata,"a"')
for k, nv in (("k1", 128), ("k2", 96)):
    o.append(".p2align 6")
    o.append(f".amdhsa_kernel {NAME}_{k}_kernel")
    o.append(f"  .amdhsa_next_free_vgpr {nv}")
    o.append("  .amdhsa_next_free_sgpr 102")
    o.append(f"  .amdhsa_accum_offset {nv}")
    o.append("  .amdhsa_group_segment_fixed_size 0")
    o.append("  .amdhsa_kernarg_size 96")
    o.append("  .amdhsa_user_sgpr_count 2")
    o.append("  .amdhsa_user_sgpr_kernarg_segment_ptr 1")
    o.append("  .amdhsa_system_sgpr_workgroup_id_x 1")
    o.append(".end_amdhsa_kernel")
open(sys.argv[1], "w").write("\n".join(o) + "\n")
```

```python
import sys
NAME = "gated_mix__mha_block_cached__dense_activation_silu__decode"
OPT = sys.argv[2] if len(sys.argv) > 2 else "nt,D8"
NT = " nt" if 'nt' in OPT else ""
import re as _re
DEPTH = int(_re.search(r"D(\d+)", OPT).group(1))
out = []
def e(s): out.append("    " + s)
def lab(s): out.append(s + ":")
def nop(n): e(f"s_nop {n-1}")

XS, QP, QB, HP, HS, MS, LP, OS, OP, YP = 0, 8192, 16384, 16640, 18688, 18816, 19072, 19200, 20480, 28672
LDS1 = 28672 + 13 * 2560
Y_OFF, ML_OFF, Y2_OFF = 0, 1 << 20, 2 << 20
LOG2E = 0x3fb8aa3b
SCALE = 0x3db504f3

STAMP = 'stamp' in OPT
DBGM = 'dbg' in OPT
dbg_n = [0]
def dstamp():
    if not DBGM: return
    k = dbg_n[0]; dbg_n[0] += 1
    e('s_memrealtime s[94:95]'); e('s_waitcnt lgkmcnt(0)'); e(f's_mov_b32 s{96+k}, s94')

stamp_n = [0]
def stamp():
    if not STAMP: return
    k = stamp_n[0]; stamp_n[0] += 1
    e(f"s_memrealtime s[{94}:{95}]")
    e("s_waitcnt lgkmcnt(0)")
    e(f"v_writelane_b32 v126, s94, {k}")
class VM:
    def __init__(s): s.l = []
    def issue(s, tag): s.l.append(tag)
    def wait(s, tag):
        n = len(s.l) - 1 - s.l.index(tag)
        e(f"s_waitcnt vmcnt({n})")

def allreduce_g(regs, tmp, op="v_add_f32"):
    for r, t in zip(regs, tmp): e(f"v_mov_b32 v{t}, v{r}")
    nop(2)
    for r, t in zip(regs, tmp): e(f"v_permlane16_swap_b32 v{r}, v{t}")
    for r, t in zip(regs, tmp): e(f"{op} v{r}, v{r}, v{t}")
    for r, t in zip(regs, tmp): e(f"v_mov_b32 v{t}, v{r}")
    nop(2)
    for r, t in zip(regs, tmp): e(f"v_permlane32_swap_b32 v{r}, v{t}")
    for r, t in zip(regs, tmp): e(f"{op} v{r}, v{r}, v{t}")

def srd(d, lo, hi, nrec):
    e(f"s_mov_b32 s{d}, s{lo}")
    e(f"s_and_b32 s{d+1}, s{hi}, 0xffff")
    e(f"s_mov_b32 s{d+2}, {nrec}")
    e(f"s_mov_b32 s{d+3}, 0x00020000")

SX, SK, SV, SWQ, SWO, SW1, SW2, SWS = 36, 40, 44, 48, 52, 56, 60, 64

def k1_body(ffn):
    vm = VM()
    stamp_n[0] = 0
    stamp()
    dbg_n[0] = 0
    dstamp()
    D = DEPTH
    D = 16
    WIN = [24 + 4*i for i in range(16)]
    WQ = [88 + 4*i for i in range(10)]
    KR = [WIN[i] for i in range(16)]
    VR = [WIN[i] for i in range(16)]
    WO = [WIN[i] for i in range(11)]
    S = [88 + i for i in range(16)]
    ACC = [104 + i for i in range(8)]
    W1 = [64 + i for i in range(5)]
    W2 = [69 + i for i in range(16)]
    K0N = 10
    Q = [4, 5, 6, 7]
    e("v_lshlrev_b32 v2, 1, v0")
    e(f"buffer_load_ushort v16, v2, s[{SX}:{SX+3}], 0 offen"); vm.issue('x0')
    e(f"buffer_load_ushort v17, v2, s[{SX}:{SX+3}], 0 offen offset:1280"); vm.issue('x1')
    e("v_bfe_u32 v8, v0, 4, 2")
    e("v_and_b32 v9, 15, v0")
    e("v_mul_u32_u24 v3, 10, v8")
    e("v_add_u32 v3, s70, v3")
    e("v_lshlrev_b32 v3, 13, v3")
    e("v_lshl_add_u32 v3, v9, 4, v3")
    for i in range(10):
        e(f"buffer_load_dwordx4 v[{WQ[i]}:{WQ[i]+3}], v3, s[{SWQ}:{SWQ+3}], s{80+i} offen"); vm.issue(f'wq{i}')
    if ffn:
        e("v_lshrrev_b32 v10, 3, v0")
        e("v_mul_u32_u24 v10, 5, v10")
        e("v_mov_b32 v11, 3456")
        e("v_mul_u32_u24 v10, v10, v11")
        e("v_and_b32 v11, 7, v0")
        e("v_lshl_add_u32 v10, v11, 2, v10")
        e("v_add_u32 v10, s71, v10")
        for i in range(5):
            e(f"buffer_load_dword v{W1[i]}, v10, s[{SW1}:{SW1+3}], 0 offen"); vm.issue(f'w1{i}')
            if i < 4: e("v_add_u32 v10, 3456, v10")
        e("v_lshlrev_b32 v10, 2, v0")
        e("v_add_u32 v10, s72, v10")
        for r in range(16):
            e(f"buffer_load_dword v{W2[r]}, v10, s[{SW2}:{SW2+3}], 0 offen"); vm.issue(f'w2{r}')
            if r < 15: e("v_add_u32 v10, 1280, v10")
    stamp()
    e("s_barrier")
    stamp()
    e("v_lshlrev_b32 v1, 8, v8")
    e("v_add_u32 v1, s73, v1")
    e("v_lshl_add_u32 v1, v9, 4, v1")
    def kv_load(reg, srdb, i, tag):
        so = ["0", "s74", "s75", "s76"][i // 4]
        e(f"buffer_load_dwordx4 v[{reg}:{reg+3}], v1, s[{srdb}:{srdb+3}], {so} offen offset:{(i%4)*1024}{NT}"); vm.issue(tag)
    def stream(n):
        if n < 16: kv_load(KR[n], SK, n, f'k{n}')
        elif n < 32: kv_load(VR[n-16], SV, n-16, f'v{n-16}')
    KPRE = int(_re.search(r'KP(\d+)', OPT).group(1)) if 'KP' in OPT else K0N
    for i in range(KPRE): stream(i)
    vm.wait('x1')
    stamp()
    e("v_lshlrev_b32 v16, 16, v16")
    e("v_lshlrev_b32 v17, 16, v17")
    e("v_lshlrev_b32 v2, 2, v0")
    e(f"ds_write_b32 v2, v16 offset:{XS}")
    e(f"ds_write_b32 v2, v17 offset:{XS+4096}")
    e("s_waitcnt lgkmcnt(0)")
    e("s_barrier")
    stamp()
    e("v_mul_u32_u24 v2, 10, v8")
    e("v_add_u32 v2, s70, v2")
    e("v_lshlrev_b32 v2, 2, v2")
    e("v_add_u32 v2, s77, v2")
    QA = [8+i for i in range(8)]
    e("v_mov_b32 v22, v8")
    e("v_mov_b32 v23, v9")
    for a in QA: e(f"v_mov_b32 v{a}, 0")
    for half in range(2):
        for k in range(3):
            pass
        e(f"ds_read_b64 v[16:17], v2 offset:{XS+half*20}")
        e(f"ds_read_b64 v[18:19], v2 offset:{XS+half*20+8}")
        e(f"ds_read_b32 v20, v2 offset:{XS+half*20+16}")
        e("s_waitcnt lgkmcnt(0)")
        for ii in range(5):
            i = half*5 + ii
            vm.wait(f'wq{i}')
            if i in (0, 9): stamp()
            for j in range(4):
                w = WQ[i] + j
                e(f"v_lshlrev_b32 v21, 16, v{w}")
                e(f"v_and_b32 v3, 0xffff0000, v{w}")
                e(f"v_fmac_f32 v{QA[2*j]}, v{16+ii}, v21")
                e(f"v_fmac_f32 v{QA[2*j+1]}, v{16+ii}, v3")
    allreduce_g(QA, [16+i for i in range(6)] + [2, 3])
    e("v_lshlrev_b32 v2, 5, v23")
    e("v_add_u32 v2, s78, v2")
    e(f"ds_write_b128 v2, v[8:11] offset:{QP}")
    e(f"ds_write_b128 v2, v[12:15] offset:{QP+16}")
    if ffn:
        e("v_lshrrev_b32 v2, 3, v0")
        e("v_mul_u32_u24 v2, 20, v2")
        for i in range(5):
            e(f"ds_read_b32 v{8+i}, v2 offset:{XS+4*i}")
            e(f"ds_read_b32 v{13+i}, v2 offset:{XS+4096+4*i}")
        for a in (18, 19, 20, 21): e(f"v_mov_b32 v{a}, 0")
        e("s_waitcnt lgkmcnt(0)")
        vm.wait('w14')
        for i in range(5):
            e(f"v_lshlrev_b32 v2, 16, v{W1[i]}")
            e(f"v_and_b32 v3, 0xffff0000, v{W1[i]}")
            e(f"v_fmac_f32 v18, v{8+i}, v2")
            e(f"v_fmac_f32 v19, v{8+i}, v3")
            e(f"v_fmac_f32 v20, v{13+i}, v2")
            e(f"v_fmac_f32 v21, v{13+i}, v3")
        nop(2)
        for a in (18, 19, 20, 21):
            e(f"v_add_f32_dpp v{a}, v{a}, v{a} row_ror:8 row_mask:0xf bank_mask:0xf")
        allreduce_g([18, 19, 20, 21], [8, 9, 10, 11])
        e("v_and_b32 v2, 7, v0")
        e("v_lshlrev_b32 v2, 3, v2")
        e("v_add_u32 v2, s79, v2")
        e(f"ds_write_b64 v2, v[18:19] offset:{HP}")
        e(f"ds_write_b64 v2, v[20:21] offset:{HP+64}")
    for i in range(KPRE, K0N): stream(i)
    e("s_waitcnt lgkmcnt(0)")
    e("s_barrier")
    stamp()
    L = f"Lq{int(ffn)}"
    e("s_cmp_ge_u32 s69, 2")
    e(f"s_cbranch_scc1 {L}_a")
    e("v_lshlrev_b32 v2, 2, v0")
    for w in range(16):
        e(f"ds_read_b32 v{8+w}, v2 offset:{QP+512*w}") if w < 14 else None
    e("s_waitcnt lgkmcnt(0)")
    for w in range(1, 14): e(f"v_add_f32 v8, v8, v{8+w}")
    e(f"ds_read_b32 v9, v2 offset:{QP+512*14}")
    e(f"ds_read_b32 v10, v2 offset:{QP+512*15}")
    e("s_waitcnt lgkmcnt(0)")
    e("v_add_f32 v8, v8, v9")
    e("v_add_f32 v8, v8, v10")
    e("v_cvt_pk_bf16_f32 v8, v8, v8")
    e("v_lshlrev_b32 v2, 1, v0")
    e(f"ds_write_b16 v2, v8 offset:{QB}")
    e(f"s_branch {L}_b")
    lab(f"{L}_a")
    if ffn:
        e("s_cmp_lg_u32 s69, 2")
        e(f"s_cbranch_scc1 {L}_b")
        e("v_and_b32 v2, 31, v0")
        e("v_lshlrev_b32 v2, 2, v2")
        for w in range(14): e(f"ds_read_b32 v{8+w}, v2 offset:{HP+128*w}")
        e("s_waitcnt lgkmcnt(0)")
        for w in range(1, 14): e(f"v_add_f32 v8, v8, v{8+w}")
        e(f"ds_read_b32 v9, v2 offset:{HP+128*14}")
        e(f"ds_read_b32 v10, v2 offset:{HP+128*15}")
        e("s_waitcnt lgkmcnt(0)")
        e("v_add_f32 v8, v8, v9")
        e("v_add_f32 v8, v8, v10")
        e("v_cvt_pk_bf16_f32 v8, v8, v8")
        e("v_lshlrev_b32 v8, 16, v8")
        e(f"v_mul_f32 v9, 0xbfb8aa3b, v8")
        e("v_exp_f32 v9, v9")
        nop(1)
        e("v_add_f32 v9, 1.0, v9")
        e("v_rcp_f32 v9, v9")
        nop(1)
        e("v_mul_f32 v8, v8, v9")
        e("v_cvt_pk_bf16_f32 v8, v8, v8")
        e("v_lshlrev_b32 v8, 16, v8")
        e(f"ds_write_b32 v2, v8 offset:{HS}")
    lab(f"{L}_b")
    e("s_waitcnt lgkmcnt(0)")
    e("s_barrier")
    stamp()
    dstamp()
    e("v_lshlrev_b32 v2, 4, v23")
    e(f"ds_read_b128 v[4:7], v2 offset:{QB}")
    if ffn:
        e("v_mov_b32 v2, 0")
        for r in range(4):
            e(f"ds_read_b128 v[{8+4*r}:{11+4*r}], v2 offset:{HS+16*r}")
        e("s_waitcnt lgkmcnt(0)")
        vm.wait('w215')
        for a in (122, 123, 124, 125): e(f"v_mov_b32 v{a}, 0")
        for r in range(16):
            e(f"v_lshlrev_b32 v2, 16, v{W2[r]}")
            e(f"v_and_b32 v3, 0xffff0000, v{W2[r]}")
            e(f"v_fmac_f32 v122, v{8+r}, v2")
            e(f"v_fmac_f32 v123, v{8+r}, v3")
        e("v_mov_b32 v2, 0")
        for r in range(4):
            e(f"ds_read_b128 v[{8+4*r}:{11+4*r}], v2 offset:{HS+64+16*r}")
        e("s_waitcnt lgkmcnt(0)")
        for r in range(16):
            e(f"v_lshlrev_b32 v2, 16, v{W2[r]}")
            e(f"v_and_b32 v3, 0xffff0000, v{W2[r]}")
            e(f"v_fmac_f32 v124, v{8+r}, v2")
            e(f"v_fmac_f32 v125, v{8+r}, v3")
        e("s_cmp_ge_u32 s69, 5")
        e(f"s_cbranch_scc1 Ly2skip")
        e("v_lshlrev_b32 v2, 3, v0")
        e("v_add_u32 v2, s90, v2")
        e(f"buffer_store_dwordx2 v[122:123], v2, s[{SWS}:{SWS+3}], 0 offen")
        e(f"buffer_store_dwordx2 v[124:125], v2, s[{SWS}:{SWS+3}], 0 offen offset:2560")
        lab("Ly2skip")
        nop(2)
    e("s_waitcnt lgkmcnt(0)")
    for i in range(K0N, 16): stream(i)
    stamp()
    for i in range(16):
        vm.wait(f'k{i}')
        for j in range(4):
            src2 = "0" if j == 0 else f"v{S[i]}"
            e(f"v_dot2_f32_bf16 v{S[i]}, v{KR[i]+j}, v{Q[j]}, {src2}")
        stream(i + D)
    nop(3)
    for rr in (8, 4, 2, 1):
        for i in range(16): e(f"v_add_f32_dpp v{S[i]}, v{S[i]}, v{S[i]} row_ror:{rr} row_mask:0xf bank_mask:0xf")
    stamp()
    e("v_mov_b32 v3, 52429")
    e("v_mul_u32_u24 v2, v0, v3")
    e("v_lshrrev_b32 v22, 22, v2")
    e("v_mul_u32_u24 v3, 80, v22")
    e("v_sub_u32 v23, v0, v3")
    e("v_mov_b32 v3, 1280")
    e("v_mul_u32_u24 v21, v22, v3")
    e("v_lshl_add_u32 v21, v23, 4, v21")
    def wo_load(i):
        e(f"v_add_u32 v2, {i*15360}, v21")
        e(f"buffer_load_dwordx4 v[{WO[i]}:{WO[i]+3}], v2, s[{SWO}:{SWO+3}], 0 offen"); vm.issue(f'wo{i}')
    for rep in range(2):
        for i in range(0, 16, 2):
            e(f"v_cvt_pk_bf16_f32 v2, v{S[i]}, v{S[i+1]}")
            e(f"v_lshlrev_b32 v{S[i]}, 16, v2")
            e(f"v_and_b32 v{S[i+1]}, 0xffff0000, v2")
        if rep == 0:
            for i in range(16): e(f"v_mul_f32 v{S[i]}, {SCALE:#x}, v{S[i]}")
    e(f"v_max3_f32 v16, v{S[0]}, v{S[1]}, v{S[2]}")
    for i in range(3, 15, 2): e(f"v_max3_f32 v16, v16, v{S[i]}, v{S[i+1]}")
    e(f"v_max_f32 v16, v16, v{S[15]}")
    e(f"v_mul_f32 v17, 0xbfb8aa3b, v16")
    e(f"s_mov_b32 s91, {LOG2E:#x}")
    for i in range(16): e(f"v_fma_f32 v{S[i]}, v{S[i]}, s91, v17")
    for i in range(16): e(f"v_exp_f32 v{S[i]}, v{S[i]}")
    nop(1)
    e(f"v_add_f32 v18, v{S[0]}, v{S[1]}")
    for i in range(2, 16): e(f"v_add_f32 v18, v18, v{S[i]}")
    for a in ACC: e(f"v_mov_b32 v{a}, 0")
    for i in range(16):
        vm.wait(f'v{i}')
        for j in range(4):
            w = VR[i] + j
            e(f"v_lshlrev_b32 v19, 16, v{w}")
            e(f"v_and_b32 v20, 0xffff0000, v{w}")
            e(f"v_fmac_f32 v{ACC[2*j]}, v{S[i]}, v19")
            e(f"v_fmac_f32 v{ACC[2*j+1]}, v{S[i]}, v20")
        stream(16 + i + D)
        if i < 11: wo_load(i)

    e("s_cmp_lg_u32 s69, 0"); e("s_cbranch_scc1 Lffn_skip")
    e("s_cmp_ge_u32 s2, 216"); e("s_cbranch_scc1 Lffn_skip")
    FW = [WIN[11] + 4*i for i in range(5)]
    X0 = [112 + i for i in range(5)]; X1 = [117 + i for i in range(5)]
    HA = S
    e("v_and_b32 v2, 63, v0"); e("v_mul_u32_u24 v3, 20, v2")
    e(f"buffer_load_dwordx4 v[112:115], v3, s[{SX}:{SX+3}], 0 offen")
    e(f"buffer_load_dword v116, v3, s[{SX}:{SX+3}], 0 offen offset:16")
    e(f"buffer_load_dwordx4 v[118:121], v3, s[{SX}:{SX+3}], 0 offen offset:1280")
    e(f"buffer_load_dword v122, v3, s[{SX}:{SX+3}], 0 offen offset:1296")
    X0 = [112, 113, 114, 115, 116]; X1 = [118, 119, 120, 121, 122]
    e("v_mov_b32 v3, 34560"); e("v_mul_u32_u24 v19, v2, v3"); e("s_lshl_b32 s94, s2, 4"); e("v_add_u32 v19, s94, v19")
    for a in HA: e(f"v_mov_b32 v{a}, 0")
    for half in range(2):
        for i in range(5):
            e(f"buffer_load_dwordx4 v[{FW[i]}:{FW[i]+3}], v19, s[{SW1}:{SW1+3}], 0 offen"); e("v_add_u32 v19, 3456, v19")
        for i in range(5):
            e(f"s_waitcnt vmcnt({4-i})")
            ii = half * 5 + i
            if ii % 2 == 0: e(f"v_lshlrev_b32 v20, 16, v{X0[ii//2]}"); e(f"v_lshlrev_b32 v17, 16, v{X1[ii//2]}")
            else: e(f"v_and_b32 v20, 0xffff0000, v{X0[ii//2]}"); e(f"v_and_b32 v17, 0xffff0000, v{X1[ii//2]}")
            for j in range(4):
                w = FW[i] + j
                e(f"v_lshlrev_b32 v2, 16, v{w}"); e(f"v_and_b32 v3, 0xffff0000, v{w}")
                e(f"v_fmac_f32 v{HA[2*j]}, v20, v2"); e(f"v_fmac_f32 v{HA[2*j+1]}, v20, v3")
                e(f"v_fmac_f32 v{HA[8+2*j]}, v17, v2"); e(f"v_fmac_f32 v{HA[8+2*j+1]}, v17, v3")
    e("v_and_b32 v2, 63, v0"); e("v_mul_u32_u24 v19, 20, v2"); e("s_mul_i32 s94, s2, 10240"); e("v_add_u32 v19, s94, v19")
    def w2_issue():
        for r in range(4):
            e(f"buffer_load_dwordx4 v[{FW[r]}:{FW[r]+3}], v19, s[{SW2}:{SW2+3}], 0 offen")
            e(f"buffer_load_dword v{123+r}, v19, s[{SW2}:{SW2+3}], 0 offen offset:16"); e("v_add_u32 v19, 1280, v19")
    w2_issue()
    for rr in (8, 4, 2, 1):
        for a in HA: e(f"v_add_f32_dpp v{a}, v{a}, v{a} row_ror:{rr} row_mask:0xf bank_mask:0xf")
    T8 = [4, 5, 6, 7, 8, 9, 10, 11]
    allreduce_g(HA[:8], T8); allreduce_g(HA[8:], T8)
    for i in range(0, 16, 2):
        e(f"v_cvt_pk_bf16_f32 v2, v{HA[i]}, v{HA[i+1]}"); e(f"v_lshlrev_b32 v{HA[i]}, 16, v2"); e(f"v_and_b32 v{HA[i+1]}, 0xffff0000, v2")
    for h8 in (0, 8):
        for i in range(8): e(f"v_mul_f32 v{T8[i]}, 0xbfb8aa3b, v{HA[h8+i]}")
        for i in range(8): e(f"v_exp_f32 v{T8[i]}, v{T8[i]}")
        nop(1)
        for i in range(8): e(f"v_add_f32 v{T8[i]}, 1.0, v{T8[i]}")
        for i in range(8): e(f"v_rcp_f32 v{T8[i]}, v{T8[i]}")
        nop(1)
        for i in range(8): e(f"v_mul_f32 v{HA[h8+i]}, v{HA[h8+i]}, v{T8[i]}")
    for i in range(0, 16, 2):
        e(f"v_cvt_pk_bf16_f32 v2, v{HA[i]}, v{HA[i+1]}"); e(f"v_lshlrev_b32 v{HA[i]}, 16, v2"); e(f"v_and_b32 v{HA[i+1]}, 0xffff0000, v2")
    A0 = [112 + i for i in range(10)]; A1 = [4 + i for i in range(10)]
    for a in A0 + A1: e(f"v_mov_b32 v{a}, 0")
    for half in range(2):
        e("s_waitcnt vmcnt(0)")
        for r in range(4):
            regs = [FW[r], FW[r]+1, FW[r]+2, FW[r]+3, 123 + r]
            for j in range(5):
                w = regs[j]
                e(f"v_lshlrev_b32 v2, 16, v{w}"); e(f"v_and_b32 v3, 0xffff0000, v{w}")
                e(f"v_fmac_f32 v{A0[2*j]}, v{HA[4*half+r]}, v2"); e(f"v_fmac_f32 v{A0[2*j+1]}, v{HA[4*half+r]}, v3")
                e(f"v_fmac_f32 v{A1[2*j]}, v{HA[8+4*half+r]}, v2"); e(f"v_fmac_f32 v{A1[2*j+1]}, v{HA[8+4*half+r]}, v3")
        if half == 0: w2_issue()
    e("v_and_b32 v2, 63, v0"); e("v_mul_u32_u24 v2, 40, v2"); e("v_add_u32 v2, s90, v2")
    e(f"buffer_store_dwordx4 v[112:115], v2, s[{SWS}:{SWS+3}], 0 offen")
    e(f"buffer_store_dwordx4 v[116:119], v2, s[{SWS}:{SWS+3}], 0 offen offset:16")
    e(f"buffer_store_dwordx2 v[120:121], v2, s[{SWS}:{SWS+3}], 0 offen offset:32")
    e(f"buffer_store_dwordx4 v[4:7], v2, s[{SWS}:{SWS+3}], 0 offen offset:2560")
    e(f"buffer_store_dwordx4 v[8:11], v2, s[{SWS}:{SWS+3}], 0 offen offset:2576")
    e(f"buffer_store_dwordx2 v[12:13], v2, s[{SWS}:{SWS+3}], 0 offen offset:2592")
    nop(2)
    lab("Lffn_skip")
    stamp()
    e("v_bfe_u32 v2, v0, 4, 6")
    e("v_lshlrev_b32 v2, 2, v2")
    e(f"ds_write_b32 v2, v16 offset:{MS}")
    e("s_waitcnt lgkmcnt(0)")
    e("s_barrier")
    stamp()
    dstamp()
    e("v_and_b32 v2, 63, v0")
    e("v_lshlrev_b32 v2, 2, v2")
    e(f"ds_read_b32 v17, v2 offset:{MS}")
    e("s_waitcnt lgkmcnt(0)")
    nop(1)
    for rr in (8, 4, 2, 1):
        e(f"v_max_f32_dpp v17, v17, v17 row_ror:{rr} row_mask:0xf bank_mask:0xf")
        nop(2)
    allreduce_g([17], [19], op="v_max_f32")
    e("v_sub_f32 v19, v16, v17")
    e(f"v_mul_f32 v19, {LOG2E:#x}, v19")
    e("v_exp_f32 v19, v19")
    nop(1)
    for a in ACC + [18]: e(f"v_mul_f32 v{a}, v{a}, v19")
    allreduce_g(ACC + [18], S[:9])
    e("v_and_b32 v2, 15, v0")
    e("v_lshlrev_b32 v2, 5, v2")
    e("v_add_u32 v2, s78, v2")
    e(f"ds_write_b128 v2, v[{ACC[0]}:{ACC[3]}] offset:{OP}")
    e(f"ds_write_b128 v2, v[{ACC[4]}:{ACC[7]}] offset:{OP+16}")
    e("v_mov_b32 v2, s69")
    e("v_lshlrev_b32 v2, 2, v2")
    e(f"ds_write_b32 v2, v18 offset:{LP}")
    e("s_waitcnt lgkmcnt(0)")
    e("s_barrier")
    L = f"Lo{int(ffn)}"
    e("s_cmp_ge_u32 s69, 2")
    e(f"s_cbranch_scc1 {L}_a")
    e("v_lshlrev_b32 v2, 2, v0")
    for w in range(16): e(f"ds_read_b32 v{88+w}, v2 offset:{OP+512*w}")
    e("s_waitcnt lgkmcnt(0)")
    for w in range(1, 16): e(f"v_add_f32 v88, v88, v{88+w}")
    e(f"ds_write_b32 v2, v88 offset:{OS}")
    e(f"s_branch {L}_b")
    lab(f"{L}_a")
    e("s_cmp_lg_u32 s69, 2")
    e(f"s_cbranch_scc1 {L}_c")
    e("v_lshlrev_b32 v2, 2, v0")
    e("v_mov_b32 v3, 0")
    e(f"ds_write_b32 v2, v3 offset:{OS}")
    e(f"s_branch {L}_b")
    lab(f"{L}_c")
    e("s_cmp_lg_u32 s69, 3")
    e(f"s_cbranch_scc1 {L}_b")
    e("v_mov_b32 v2, 0")
    for r in range(4): e(f"ds_read_b128 v[{88+4*r}:{91+4*r}], v2 offset:{LP+16*r}")
    e("s_waitcnt lgkmcnt(0)")
    for w in range(1, 16): e(f"v_add_f32 v88, v88, v{88+w}")
    e("v_mov_b32 v89, v88")
    e("v_mov_b32 v88, v17")
    e("v_mov_b32 v2, s92")
    e(f"buffer_store_dwordx2 v[88:89], v2, s[{SWS}:{SWS+3}], 0 offen")
    lab(f"{L}_b")
    e("s_waitcnt lgkmcnt(0)")
    e("s_barrier")
    stamp()
    e("v_lshlrev_b32 v2, 2, v22")
    for i in range(11): e(f"ds_read_b32 v{88+i}, v2 offset:{OS+48*i}")
    for a in ACC: e(f"v_mov_b32 v{a}, 0")
    e("s_waitcnt lgkmcnt(0)")
    for i in range(11):
        vm.wait(f'wo{i}')
        for j in range(4):
            w = WO[i] + j
            e(f"v_lshlrev_b32 v19, 16, v{w}")
            e(f"v_and_b32 v20, 0xffff0000, v{w}")
            e(f"v_fmac_f32 v{ACC[2*j]}, v{88+i}, v19")
            e(f"v_fmac_f32 v{ACC[2*j+1]}, v{88+i}, v20")
    e("v_mov_b32 v3, 2560")
    e("v_mul_u32_u24 v2, v22, v3")
    e("v_lshl_add_u32 v2, v23, 5, v2")
    e(f"ds_write_b128 v2, v[{ACC[0]}:{ACC[3]}] offset:{YP}")
    e(f"ds_write_b128 v2, v[{ACC[4]}:{ACC[7]}] offset:{YP+16}")
    e("s_waitcnt lgkmcnt(0)")
    e("s_barrier")
    stamp()
    dstamp()
    if DBGM:
        for k in range(4): e(f"v_mov_b32 v{120+k}, s{96+k}")
        e("s_lshl_b32 s94, s2, 4"); e(f"s_add_u32 s94, s94, {5<<20}"); e("v_mov_b32 v124, s94")
        e("s_cmp_lg_u32 s69, 0"); e(f"s_cbranch_scc1 Ldbgs{int(ffn)}")
        e(f"buffer_store_dwordx4 v[120:123], v124, s[{SWS}:{SWS+3}], 0 offen")
        lab(f"Ldbgs{int(ffn)}")
    if STAMP:
        e("s_lshl_b32 s94, s2, 4")
        e("s_add_u32 s94, s94, s69")
        e("s_lshl_b32 s94, s94, 8")
        e(f"s_add_u32 s94, s94, {3<<20}")
        e("v_and_b32 v2, 63, v0")
        e("v_lshlrev_b32 v2, 2, v2")
        e("v_add_u32 v2, s94, v2")
        e(f"buffer_store_dword v126, v2, s[{SWS}:{SWS+3}], 0 offen")
    e("s_cmp_ge_u32 s69, 10")
    e("s_cbranch_scc1 Lk1_end")
    e("v_lshlrev_b32 v2, 2, v0")
    for gq in range(12): e(f"ds_read_b32 v{88+gq}, v2 offset:{YP+2560*gq}")
    e("s_waitcnt lgkmcnt(0)")
    for gq in range(1, 12): e(f"v_add_f32 v88, v88, v{88+gq}")
    e("v_add_u32 v2, s93, v2")
    e(f"buffer_store_dword v88, v2, s[{SWS}:{SWS+3}], 0 offen")
    e("s_branch Lk1_end")

def k1():
    lab(f"{NAME}_k1_kernel")
    e("s_cmp_ge_u32 s2, 256")
    e("s_cbranch_scc1 Lk1_end")
    e("s_load_dwordx16 s[16:31], s[0:1], 0")
    e("s_load_dwordx2 s[32:33], s[0:1], 88")
    e("v_lshrrev_b32 v2, 6, v0")
    nop(1)
    e("v_readfirstlane_b32 s69, v2")
    e("s_and_b32 s3, s2, 31")
    e("s_lshr_b32 s4, s2, 5")
    e("s_and_b32 s5, s4, 1")
    e("s_lshr_b32 s6, s4, 1")
    e("s_mul_i32 s70, s69, 40")
    e("s_lshl_b32 s71, s2, 5")
    e("s_mul_i32 s72, s2, 20480")
    e("s_lshl_b32 s73, s69, 14")
    e("s_mov_b32 s74, 4096"); e("s_mov_b32 s75, 8192"); e("s_mov_b32 s76, 12288")
    e("s_lshl_b32 s77, s5, 12")
    e("s_lshl_b32 s78, s69, 9")
    e("s_lshl_b32 s79, s69, 7")
    for i in range(10): e(f"s_mov_b32 s{80+i}, {i*8192}")
    e("s_mul_i32 s90, s2, 5120")
    e(f"s_add_u32 s90, s90, {Y2_OFF}")
    e("s_lshl_b32 s92, s2, 3")
    e(f"s_add_u32 s92, s92, {ML_OFF}")
    e("s_mul_i32 s93, s2, 2560")
    e("s_waitcnt lgkmcnt(0)")
    srd(SX, 16, 17, 2560)
    e("s_lshl_b32 s7, s5, 5")
    e("s_add_u32 s7, s7, s3")
    e("s_lshl_b32 s7, s7, 20")
    e("s_lshl_b32 s8, s6, 18")
    e("s_add_u32 s7, s7, s8")
    e("s_add_u32 s10, s18, s7"); e("s_addc_u32 s11, s19, 0")
    srd(SK, 10, 11, 262144)
    e("s_add_u32 s10, s20, s7"); e("s_addc_u32 s11, s21, 0")
    srd(SV, 10, 11, 262144)
    e("s_lshl_b32 s7, s3, 8")
    e("s_add_u32 s10, s22, s7"); e("s_addc_u32 s11, s23, 0")
    e(f"s_sub_u32 s8, {640*8192}, s7")
    srd(SWQ, 10, 11, "s8")
    e("s_mul_i32 s7, s3, 163840")
    e("s_add_u32 s10, s24, s7"); e("s_addc_u32 s11, s25, 0")
    e(f"s_sub_u32 s8, {4096*1280}, s7")
    srd(SWO, 10, 11, "s8")
    srd(SW1, 28, 29, 640*3456)
    srd(SW2, 30, 31, 1728*1280)
    srd(SWS, 32, 33, 8 << 20)
    k1_body(False)
    lab("Lk1_end")
    e("s_endpgm")

def k2():
    W, RA, RB = 0, 512, 1536
    lab(f"{NAME}_k2_kernel")
    e("s_cmp_ge_u32 s2, 40")
    e("s_cbranch_scc1 Lk2_end")
    e("s_load_dwordx2 s[16:17], s[0:1], 0")
    e("s_load_dwordx2 s[18:19], s[0:1], 64")
    e("s_load_dwordx2 s[20:21], s[0:1], 72")
    e("s_load_dwordx2 s[22:23], s[0:1], 88")
    e("s_cmp_ge_u32 s2, 20")
    e("s_cselect_b32 s3, 1, 0")
    e("s_mul_i32 s4, s3, 20")
    e("s_sub_u32 s4, s2, s4")
    e("s_waitcnt lgkmcnt(0)")
    srd(36, 16, 17, 2560)
    srd(40, 18, 19, 1280)
    srd(44, 20, 21, 2560)
    srd(48, 22, 23, 2 << 20)
    e(f"s_add_u32 s24, s22, {Y2_OFF}"); e("s_addc_u32 s25, s23, 0")
    srd(52, 24, 25, 216*5120)
    e("v_lshrrev_b32 v1, 5, v0")
    e("v_and_b32 v2, 31, v0")
    e("v_and_b32 v3, 127, v0")
    e("v_lshrrev_b32 v4, 2, v3")
    e("v_and_b32 v5, 3, v3")
    e("v_lshl_add_u32 v4, v5, 6, v4")
    e("s_lshl_b32 s5, s3, 5")
    e("v_add_u32 v4, s5, v4")
    e("v_lshlrev_b32 v4, 3, v4")
    e(f"v_add_u32 v4, {ML_OFF}, v4")
    e("buffer_load_dwordx2 v[6:7], v4, s[48:51], 0 offen")
    e("v_lshrrev_b32 v4, 2, v1")
    e("v_and_b32 v5, 3, v1")
    e("v_lshl_add_u32 v4, v5, 6, v4")
    e("v_add_u32 v4, s5, v4")
    e("v_mov_b32 v5, 2560")
    e("v_mul_u32_u24 v4, v4, v5")
    e("s_lshl_b32 s6, s4, 7")
    e("v_lshl_add_u32 v4, v2, 2, v4")
    e("v_add_u32 v4, s6, v4")
    for i in range(16):
        e(f"buffer_load_dword v{16+i}, v4, s[48:51], 0 offen")
        if i < 15: e("v_add_u32 v4, 5120, v4")
    e("v_lshlrev_b32 v4, 1, v1")
    e("v_add_u32 v4, s3, v4")
    e("v_mul_u32_u24 v4, v4, v5")
    e("v_lshl_add_u32 v4, v2, 2, v4")
    e("v_add_u32 v4, s6, v4")
    for i in range(27):
        e(f"buffer_load_dword v{80+i}, v4, s[52:55], 0 offen")
        if i < 26: e("v_add_u32 v4, 40960, v4")
    e("v_and_b32 v4, 63, v0")
    e("v_mul_u32_u24 v4, 20, v4")
    e("s_mul_i32 s7, s3, 1280")
    e("v_add_u32 v5, s7, v4")
    e("buffer_load_dwordx4 v[48:51], v5, s[36:39], 0 offen")
    e("buffer_load_dword v52, v5, s[36:39], 0 offen offset:16")
    e("buffer_load_dwordx4 v[56:59], v4, s[40:43], 0 offen")
    e("buffer_load_dword v60, v4, s[40:43], 0 offen offset:16")
    e("s_waitcnt vmcnt(47)")
    e("v_mov_b32 v8, v6")
    nop(2)
    e("v_max_f32_dpp v8, v8, v8 quad_perm:[1,0,3,2] row_mask:0xf bank_mask:0xf")
    nop(2)
    e("v_max_f32_dpp v8, v8, v8 quad_perm:[2,3,0,1] row_mask:0xf bank_mask:0xf")
    e("v_sub_f32 v9, v6, v8")
    e(f"v_mul_f32 v9, {LOG2E:#x}, v9")
    e("v_exp_f32 v9, v9")
    nop(1)
    e("v_mul_f32 v10, v9, v7")
    nop(2)
    e("v_add_f32_dpp v10, v10, v10 quad_perm:[1,0,3,2] row_mask:0xf bank_mask:0xf")
    nop(2)
    e("v_add_f32_dpp v10, v10, v10 quad_perm:[2,3,0,1] row_mask:0xf bank_mask:0xf")
    e("v_rcp_f32 v10, v10")
    nop(1)
    e("v_mul_f32 v9, v9, v10")
    e("v_lshlrev_b32 v4, 2, v3")
    e(f"ds_write_b32 v4, v9 offset:{W}")
    e("s_waitcnt lgkmcnt(0)")
    e("s_barrier")
    e("v_lshlrev_b32 v4, 2, v1")
    for i in range(16): e(f"ds_read_b32 v{64+i}, v4 offset:{W+32*i}")
    e("s_waitcnt lgkmcnt(0)")
    e("s_waitcnt vmcnt(31)")
    e("v_mul_f32 v8, v16, v64")
    for i in range(1, 16): e(f"v_fmac_f32 v8, v{16+i}, v{64+i}")
    e("s_waitcnt vmcnt(4)")
    e("v_add_f32 v9, v80, v81")
    for i in range(2, 27): e(f"v_add_f32 v9, v9, v{80+i}")
    e("v_lshlrev_b32 v4, 2, v0")
    e(f"ds_write_b32 v4, v8 offset:{RA}")
    e(f"ds_write_b32 v4, v9 offset:{RB}")
    e("s_waitcnt vmcnt(0)")
    e("v_mov_b32 v10, 0")
    for j in range(5):
        e(f"v_lshlrev_b32 v11, 16, v{48+j}")
        e(f"v_lshlrev_b32 v12, 16, v{56+j}")
        e("v_mul_f32 v11, v11, v12")
        e(f"v_and_b32 v12, 0xffff0000, v{48+j}")
        e(f"v_and_b32 v13, 0xffff0000, v{56+j}")
        e("v_mul_f32 v12, v12, v13")
        e("v_cvt_pk_bf16_f32 v11, v11, v12")
        e("v_lshlrev_b32 v12, 16, v11")
        e("v_and_b32 v11, 0xffff0000, v11")
        e("v_add_f32 v10, v10, v12")
        e("v_add_f32 v10, v10, v11")
    for rr in (8, 4, 2, 1):
        nop(2)
        e(f"v_add_f32_dpp v10, v10, v10 row_ror:{rr} row_mask:0xf bank_mask:0xf")
    allreduce_g([10], [11])
    e("v_cvt_pk_bf16_f32 v10, v10, v10")
    e("v_lshlrev_b32 v10, 16, v10")
    e("v_mul_f32 v10, 0xbfb8aa3b, v10")
    e("v_exp_f32 v10, v10")
    nop(1)
    e("v_add_f32 v10, 1.0, v10")
    e("v_rcp_f32 v10, v10")
    nop(1)
    e("v_cvt_pk_bf16_f32 v10, v10, v10")
    e("v_lshlrev_b32 v10, 16, v10")
    e("v_sub_f32 v11, 1.0, v10")
    e("v_cvt_pk_bf16_f32 v11, v11, v11")
    e("v_lshlrev_b32 v11, 16, v11")
    e("s_waitcnt lgkmcnt(0)")
    e("s_barrier")
    e("v_lshlrev_b32 v4, 2, v2")
    for r in range(8):
        e(f"ds_read_b32 v{16+r}, v4 offset:{RA+128*r}")
        e(f"ds_read_b32 v{32+r}, v4 offset:{RB+128*r}")
    e("s_waitcnt lgkmcnt(0)")
    for r in range(1, 8):
        e(f"v_add_f32 v16, v16, v{16+r}")
        e(f"v_add_f32 v32, v32, v{32+r}")
    e("v_cvt_pk_bf16_f32 v16, v16, v32")
    e("v_lshlrev_b32 v17, 16, v16")
    e("v_and_b32 v18, 0xffff0000, v16")
    e("v_mul_f32 v17, v10, v17")
    e("v_mul_f32 v18, v11, v18")
    e("v_cvt_pk_bf16_f32 v16, v17, v18")
    e("v_lshlrev_b32 v17, 16, v16")
    e("v_and_b32 v18, 0xffff0000, v16")
    e("v_add_f32 v17, v17, v18")
    e("v_cvt_pk_bf16_f32 v17, v17, v17")
    if DBGM:
        e("s_cmp_lg_u32 s2, 0"); e("s_cbranch_scc1 Lk2dbg")
        e("s_load_dwordx2 s[26:27], s[0:1], 80"); e("s_waitcnt lgkmcnt(0)")
        srd(56, 26, 27, 256); srd(60, 22, 23, 8 << 20)
        e("v_and_b32 v24, 3, v0"); e("v_mul_u32_u24 v25, 85, v24"); e("v_lshlrev_b32 v25, 4, v25"); e(f"v_add_u32 v25, {5<<20}, v25")
        e("buffer_load_dwordx4 v[28:31], v25, s[60:63], 0 offen"); e("s_waitcnt vmcnt(0)")
        e("s_memrealtime s[28:29]"); e("s_waitcnt lgkmcnt(0)"); e("v_mov_b32 v26, s28")
        e("v_cmp_eq_u32 vcc, 3, v24"); e("s_nop 1"); e("v_cndmask_b32 v29, v29, v26, vcc")
        e("v_lshlrev_b32 v24, 4, v24")
        e("buffer_store_dwordx4 v[28:31], v24, s[56:59], 0 offen")
        lab("Lk2dbg")
    e("v_cmp_gt_u32 vcc, 32, v0")
    e("s_and_saveexec_b64 s[8:9], vcc")
    e("s_cbranch_execz Lk2_end")
    e("v_lshlrev_b32 v4, 1, v2")
    e("s_lshl_b32 s6, s4, 6")
    e("v_add_u32 v4, s6, v4")
    e("v_add_u32 v4, s7, v4")
    e("buffer_store_short v17, v4, s[44:47], 0 offen")
    lab("Lk2_end")
    e("s_endpgm")

hdr = open(f"cdna_kernels/{NAME}.s.ref").read().split("; Override launch")[0]
o = [hdr.rstrip("\n")]
o.append(f"; @launch kernel={NAME}_k1_kernel grid=(256,1,1) block=(1024,1,1) lds={LDS1}")
o.append(f"; @launch kernel={NAME}_k2_kernel grid=(40,1,1) block=(256,1,1) lds=4096")
o.append('.amdgcn_target "amdgcn-amd-amdhsa--gfx950"')
o.append(".text")
for k in ("k1", "k2"):
    o.append(f".globl {NAME}_{k}_kernel")
    o.append(f".type {NAME}_{k}_kernel,@function")
o.append(".p2align 8")
k1()
out.append(".p2align 8")
k2()
o += out
o.append('.section .rodata,"a"')
for k, nv in (("k1", 128), ("k2", 112)):
    o.append(".p2align 6")
    o.append(f".amdhsa_kernel {NAME}_{k}_kernel")
    o.append(f"  .amdhsa_next_free_vgpr {nv}")
    o.append("  .amdhsa_next_free_sgpr 102")
    o.append(f"  .amdhsa_accum_offset {nv}")
    o.append("  .amdhsa_group_segment_fixed_size 0")
    o.append("  .amdhsa_kernarg_size 96")
    o.append("  .amdhsa_user_sgpr_count 2")
    o.append("  .amdhsa_user_sgpr_kernarg_segment_ptr 1")
    o.append("  .amdhsa_system_sgpr_workgroup_id_x 1")
    o.append(".end_amdhsa_kernel")
open(sys.argv[1], "w").write("\n".join(o) + "\n")
```

```python
import sys
NAME = "gated_mix__mha_block_cached__dense_activation_silu__decode"
OPT = sys.argv[2] if len(sys.argv) > 2 else "nt,D8"
NT = " nt" if 'nt' in OPT else ""
import re as _re
DEPTH = int(_re.search(r"D(\d+)", OPT).group(1))
out = []
def e(s): out.append("    " + s)
def lab(s): out.append(s + ":")
def nop(n): e(f"s_nop {n-1}")

XS, QP, QB, HP, HS, MS, LP, OS, OP, YP = 0, 8192, 16384, 16640, 18688, 18816, 19072, 19200, 20480, 28672
LDS1 = 28672 + 13 * 2560
Y_OFF, ML_OFF, Y2_OFF = 0, 1 << 20, 2 << 20
LOG2E = 0x3fb8aa3b
SCALE = 0x3db504f3

STAMP = 'stamp' in OPT
DBGM = 'dbg' in OPT
dbg_n = [0]
def dstamp():
    if not DBGM: return
    k = dbg_n[0]; dbg_n[0] += 1
    e('s_memrealtime s[94:95]'); e('s_waitcnt lgkmcnt(0)'); e(f's_mov_b32 s{96+k}, s94')

stamp_n = [0]
def stamp():
    if not STAMP: return
    k = stamp_n[0]; stamp_n[0] += 1
    e(f"s_memrealtime s[{94}:{95}]")
    e("s_waitcnt lgkmcnt(0)")
    e(f"v_writelane_b32 v126, s94, {k}")
class VM:
    def __init__(s): s.l = []
    def issue(s, tag): s.l.append(tag)
    def wait(s, tag):
        n = len(s.l) - 1 - s.l.index(tag)
        e(f"s_waitcnt vmcnt({n})")

def allreduce_g(regs, tmp, op="v_add_f32"):
    for r, t in zip(regs, tmp): e(f"v_mov_b32 v{t}, v{r}")
    nop(2)
    for r, t in zip(regs, tmp): e(f"v_permlane16_swap_b32 v{r}, v{t}")
    for r, t in zip(regs, tmp): e(f"{op} v{r}, v{r}, v{t}")
    for r, t in zip(regs, tmp): e(f"v_mov_b32 v{t}, v{r}")
    nop(2)
    for r, t in zip(regs, tmp): e(f"v_permlane32_swap_b32 v{r}, v{t}")
    for r, t in zip(regs, tmp): e(f"{op} v{r}, v{r}, v{t}")

def srd(d, lo, hi, nrec):
    e(f"s_mov_b32 s{d}, s{lo}")
    e(f"s_and_b32 s{d+1}, s{hi}, 0xffff")
    e(f"s_mov_b32 s{d+2}, {nrec}")
    e(f"s_mov_b32 s{d+3}, 0x00020000")

SX, SK, SV, SWQ, SWO, SW1, SW2, SWS = 36, 40, 44, 48, 52, 56, 60, 64

def k1_body(ffn):
    vm = VM()
    stamp_n[0] = 0
    stamp()
    dbg_n[0] = 0
    dstamp()
    D = DEPTH
    D = 16
    WIN = [24 + 4*i for i in range(16)]
    WQ = [88 + 4*i for i in range(10)]
    KR = [WIN[i] for i in range(16)]
    VR = [WIN[i] for i in range(16)]
    WO = [WIN[i] for i in range(11)]
    S = [88 + i for i in range(16)]
    ACC = [104 + i for i in range(8)]
    W1 = [64 + i for i in range(5)]
    W2 = [69 + i for i in range(16)]
    K0N = 10
    Q = [4, 5, 6, 7]
    e("v_lshlrev_b32 v2, 1, v0")
    e(f"buffer_load_ushort v16, v2, s[{SX}:{SX+3}], 0 offen"); vm.issue('x0')
    e(f"buffer_load_ushort v17, v2, s[{SX}:{SX+3}], 0 offen offset:1280"); vm.issue('x1')
    e("v_bfe_u32 v8, v0, 4, 2")
    e("v_and_b32 v9, 15, v0")
    e("v_mul_u32_u24 v3, 10, v8")
    e("v_add_u32 v3, s70, v3")
    e("v_lshlrev_b32 v3, 13, v3")
    e("v_lshl_add_u32 v3, v9, 4, v3")
    for i in range(10):
        e(f"buffer_load_dwordx4 v[{WQ[i]}:{WQ[i]+3}], v3, s[{SWQ}:{SWQ+3}], s{80+i} offen"); vm.issue(f'wq{i}')
    if ffn:
        e("v_lshrrev_b32 v10, 3, v0")
        e("v_mul_u32_u24 v10, 5, v10")
        e("v_mov_b32 v11, 3456")
        e("v_mul_u32_u24 v10, v10, v11")
        e("v_and_b32 v11, 7, v0")
        e("v_lshl_add_u32 v10, v11, 2, v10")
        e("v_add_u32 v10, s71, v10")
        for i in range(5):
            e(f"buffer_load_dword v{W1[i]}, v10, s[{SW1}:{SW1+3}], 0 offen"); vm.issue(f'w1{i}')
            if i < 4: e("v_add_u32 v10, 3456, v10")
    stamp()
    e("s_barrier")
    stamp()
    e("v_lshlrev_b32 v1, 8, v8")
    e("v_add_u32 v1, s73, v1")
    e("v_lshl_add_u32 v1, v9, 4, v1")
    def kv_load(reg, srdb, i, tag):
        so = ["0", "s74", "s75", "s76"][i // 4]
        e(f"buffer_load_dwordx4 v[{reg}:{reg+3}], v1, s[{srdb}:{srdb+3}], {so} offen offset:{(i%4)*1024}{NT}"); vm.issue(tag)
    def stream(n):
        if n < 16: kv_load(KR[n], SK, n, f'k{n}')
        elif n < 32: kv_load(VR[n-16], SV, n-16, f'v{n-16}')
    KPRE = int(_re.search(r'KP(\d+)', OPT).group(1)) if 'KP' in OPT else K0N
    for i in range(KPRE): stream(i)
    vm.wait('x1')
    stamp()
    e("v_lshlrev_b32 v16, 16, v16")
    e("v_lshlrev_b32 v17, 16, v17")
    e("v_lshlrev_b32 v2, 2, v0")
    e(f"ds_write_b32 v2, v16 offset:{XS}")
    e(f"ds_write_b32 v2, v17 offset:{XS+4096}")
    e("s_waitcnt lgkmcnt(0)")
    e("s_barrier")
    stamp()
    e("v_mul_u32_u24 v2, 10, v8")
    e("v_add_u32 v2, s70, v2")
    e("v_lshlrev_b32 v2, 2, v2")
    e("v_add_u32 v2, s77, v2")
    QA = [8+i for i in range(8)]
    e("v_mov_b32 v22, v8")
    e("v_mov_b32 v23, v9")
    for a in QA: e(f"v_mov_b32 v{a}, 0")
    for half in range(2):
        for k in range(3):
            pass
        e(f"ds_read_b64 v[16:17], v2 offset:{XS+half*20}")
        e(f"ds_read_b64 v[18:19], v2 offset:{XS+half*20+8}")
        e(f"ds_read_b32 v20, v2 offset:{XS+half*20+16}")
        e("s_waitcnt lgkmcnt(0)")
        for ii in range(5):
            i = half*5 + ii
            vm.wait(f'wq{i}')
            if i in (0, 9): stamp()
            for j in range(4):
                w = WQ[i] + j
                e(f"v_lshlrev_b32 v21, 16, v{w}")
                e(f"v_and_b32 v3, 0xffff0000, v{w}")
                e(f"v_fmac_f32 v{QA[2*j]}, v{16+ii}, v21")
                e(f"v_fmac_f32 v{QA[2*j+1]}, v{16+ii}, v3")
    allreduce_g(QA, [16+i for i in range(6)] + [2, 3])
    e("v_lshlrev_b32 v2, 5, v23")
    e("v_add_u32 v2, s78, v2")
    e(f"ds_write_b128 v2, v[8:11] offset:{QP}")
    e(f"ds_write_b128 v2, v[12:15] offset:{QP+16}")
    if ffn:
        e("v_lshrrev_b32 v2, 3, v0")
        e("v_mul_u32_u24 v2, 20, v2")
        for i in range(5):
            e(f"ds_read_b32 v{8+i}, v2 offset:{XS+4*i}")
            e(f"ds_read_b32 v{13+i}, v2 offset:{XS+4096+4*i}")
        for a in (18, 19, 20, 21): e(f"v_mov_b32 v{a}, 0")
        e("s_waitcnt lgkmcnt(0)")
        vm.wait('w14')
        for i in range(5):
            e(f"v_lshlrev_b32 v2, 16, v{W1[i]}")
            e(f"v_and_b32 v3, 0xffff0000, v{W1[i]}")
            e(f"v_fmac_f32 v18, v{8+i}, v2")
            e(f"v_fmac_f32 v19, v{8+i}, v3")
            e(f"v_fmac_f32 v20, v{13+i}, v2")
            e(f"v_fmac_f32 v21, v{13+i}, v3")
        nop(2)
        for a in (18, 19, 20, 21):
            e(f"v_add_f32_dpp v{a}, v{a}, v{a} row_ror:8 row_mask:0xf bank_mask:0xf")
        allreduce_g([18, 19, 20, 21], [8, 9, 10, 11])
        e("v_and_b32 v2, 7, v0")
        e("v_lshlrev_b32 v2, 3, v2")
        e("v_add_u32 v2, s79, v2")
        e(f"ds_write_b64 v2, v[18:19] offset:{HP}")
        e(f"ds_write_b64 v2, v[20:21] offset:{HP+64}")
    for i in range(KPRE, K0N): stream(i)
    if ffn:
        e("v_lshlrev_b32 v10, 2, v0")
        e("v_add_u32 v10, s72, v10")
        for r in range(16):
            e(f"buffer_load_dword v{W2[r]}, v10, s[{SW2}:{SW2+3}], 0 offen"); vm.issue(f'w2{r}')
            if r < 15: e("v_add_u32 v10, 1280, v10")
    e("s_waitcnt lgkmcnt(0)")
    e("s_barrier")
    stamp()
    L = f"Lq{int(ffn)}"
    e("s_cmp_ge_u32 s69, 2")
    e(f"s_cbranch_scc1 {L}_a")
    e("v_lshlrev_b32 v2, 2, v0")
    for w in range(16):
        e(f"ds_read_b32 v{8+w}, v2 offset:{QP+512*w}") if w < 14 else None
    e("s_waitcnt lgkmcnt(0)")
    for w in range(1, 14): e(f"v_add_f32 v8, v8, v{8+w}")
    e(f"ds_read_b32 v9, v2 offset:{QP+512*14}")
    e(f"ds_read_b32 v10, v2 offset:{QP+512*15}")
    e("s_waitcnt lgkmcnt(0)")
    e("v_add_f32 v8, v8, v9")
    e("v_add_f32 v8, v8, v10")
    e("v_cvt_pk_bf16_f32 v8, v8, v8")
    e("v_lshlrev_b32 v2, 1, v0")
    e(f"ds_write_b16 v2, v8 offset:{QB}")
    e(f"s_branch {L}_b")
    lab(f"{L}_a")
    if ffn:
        e("s_cmp_lg_u32 s69, 2")
        e(f"s_cbranch_scc1 {L}_b")
        e("v_and_b32 v2, 31, v0")
        e("v_lshlrev_b32 v2, 2, v2")
        for w in range(14): e(f"ds_read_b32 v{8+w}, v2 offset:{HP+128*w}")
        e("s_waitcnt lgkmcnt(0)")
        for w in range(1, 14): e(f"v_add_f32 v8, v8, v{8+w}")
        e(f"ds_read_b32 v9, v2 offset:{HP+128*14}")
        e(f"ds_read_b32 v10, v2 offset:{HP+128*15}")
        e("s_waitcnt lgkmcnt(0)")
        e("v_add_f32 v8, v8, v9")
        e("v_add_f32 v8, v8, v10")
        e("v_cvt_pk_bf16_f32 v8, v8, v8")
        e("v_lshlrev_b32 v8, 16, v8")
        e(f"v_mul_f32 v9, 0xbfb8aa3b, v8")
        e("v_exp_f32 v9, v9")
        nop(1)
        e("v_add_f32 v9, 1.0, v9")
        e("v_rcp_f32 v9, v9")
        nop(1)
        e("v_mul_f32 v8, v8, v9")
        e("v_cvt_pk_bf16_f32 v8, v8, v8")
        e("v_lshlrev_b32 v8, 16, v8")
        e(f"ds_write_b32 v2, v8 offset:{HS}")
    lab(f"{L}_b")
    e("s_waitcnt lgkmcnt(0)")
    e("s_barrier")
    stamp()
    dstamp()
    e("v_lshlrev_b32 v2, 4, v23")
    e(f"ds_read_b128 v[4:7], v2 offset:{QB}")
    if ffn:
        e("v_mov_b32 v2, 0")
        for r in range(4):
            e(f"ds_read_b128 v[{8+4*r}:{11+4*r}], v2 offset:{HS+16*r}")
        e("s_waitcnt lgkmcnt(0)")
        vm.wait('w215')
        for a in (122, 123, 124, 125): e(f"v_mov_b32 v{a}, 0")
        for r in range(16):
            e(f"v_lshlrev_b32 v2, 16, v{W2[r]}")
            e(f"v_and_b32 v3, 0xffff0000, v{W2[r]}")
            e(f"v_fmac_f32 v122, v{8+r}, v2")
            e(f"v_fmac_f32 v123, v{8+r}, v3")
        e("v_mov_b32 v2, 0")
        for r in range(4):
            e(f"ds_read_b128 v[{8+4*r}:{11+4*r}], v2 offset:{HS+64+16*r}")
        e("s_waitcnt lgkmcnt(0)")
        for r in range(16):
            e(f"v_lshlrev_b32 v2, 16, v{W2[r]}")
            e(f"v_and_b32 v3, 0xffff0000, v{W2[r]}")
            e(f"v_fmac_f32 v124, v{8+r}, v2")
            e(f"v_fmac_f32 v125, v{8+r}, v3")
        e("s_cmp_ge_u32 s69, 5")
        e(f"s_cbranch_scc1 Ly2skip")
        e("v_lshlrev_b32 v2, 3, v0")
        e("v_add_u32 v2, s90, v2")
        e(f"buffer_store_dwordx2 v[122:123], v2, s[{SWS}:{SWS+3}], 0 offen")
        e(f"buffer_store_dwordx2 v[124:125], v2, s[{SWS}:{SWS+3}], 0 offen offset:2560")
        lab("Ly2skip")
        nop(2)
    e("s_waitcnt lgkmcnt(0)")
    for i in range(K0N, 16): stream(i)
    stamp()
    for i in range(16):
        vm.wait(f'k{i}')
        for j in range(4):
            src2 = "0" if j == 0 else f"v{S[i]}"
            e(f"v_dot2_f32_bf16 v{S[i]}, v{KR[i]+j}, v{Q[j]}, {src2}")
        stream(i + D)
    nop(3)
    for rr in (8, 4, 2, 1):
        for i in range(16): e(f"v_add_f32_dpp v{S[i]}, v{S[i]}, v{S[i]} row_ror:{rr} row_mask:0xf bank_mask:0xf")
    stamp()
    e("v_mov_b32 v3, 52429")
    e("v_mul_u32_u24 v2, v0, v3")
    e("v_lshrrev_b32 v22, 22, v2")
    e("v_mul_u32_u24 v3, 80, v22")
    e("v_sub_u32 v23, v0, v3")
    e("v_mov_b32 v3, 1280")
    e("v_mul_u32_u24 v21, v22, v3")
    e("v_lshl_add_u32 v21, v23, 4, v21")
    def wo_load(i):
        e(f"v_add_u32 v2, {i*15360}, v21")
        e(f"buffer_load_dwordx4 v[{WO[i]}:{WO[i]+3}], v2, s[{SWO}:{SWO+3}], 0 offen"); vm.issue(f'wo{i}')
    for rep in range(2):
        for i in range(0, 16, 2):
            e(f"v_cvt_pk_bf16_f32 v2, v{S[i]}, v{S[i+1]}")
            e(f"v_lshlrev_b32 v{S[i]}, 16, v2")
            e(f"v_and_b32 v{S[i+1]}, 0xffff0000, v2")
        if rep == 0:
            for i in range(16): e(f"v_mul_f32 v{S[i]}, {SCALE:#x}, v{S[i]}")
    e(f"v_max3_f32 v16, v{S[0]}, v{S[1]}, v{S[2]}")
    for i in range(3, 15, 2): e(f"v_max3_f32 v16, v16, v{S[i]}, v{S[i+1]}")
    e(f"v_max_f32 v16, v16, v{S[15]}")
    e(f"v_mul_f32 v17, 0xbfb8aa3b, v16")
    e(f"s_mov_b32 s91, {LOG2E:#x}")
    for i in range(16): e(f"v_fma_f32 v{S[i]}, v{S[i]}, s91, v17")
    for i in range(16): e(f"v_exp_f32 v{S[i]}, v{S[i]}")
    nop(1)
    e(f"v_add_f32 v18, v{S[0]}, v{S[1]}")
    for i in range(2, 16): e(f"v_add_f32 v18, v18, v{S[i]}")
    for a in ACC: e(f"v_mov_b32 v{a}, 0")
    for i in range(16):
        vm.wait(f'v{i}')
        for j in range(4):
            w = VR[i] + j
            e(f"v_lshlrev_b32 v19, 16, v{w}")
            e(f"v_and_b32 v20, 0xffff0000, v{w}")
            e(f"v_fmac_f32 v{ACC[2*j]}, v{S[i]}, v19")
            e(f"v_fmac_f32 v{ACC[2*j+1]}, v{S[i]}, v20")
        stream(16 + i + D)
        if i < 11: wo_load(i)
    stamp()
    e("v_bfe_u32 v2, v0, 4, 6")
    e("v_lshlrev_b32 v2, 2, v2")
    e(f"ds_write_b32 v2, v16 offset:{MS}")
    e("s_waitcnt lgkmcnt(0)")
    e("s_barrier")
    stamp()
    dstamp()
    e("v_and_b32 v2, 63, v0")
    e("v_lshlrev_b32 v2, 2, v2")
    e(f"ds_read_b32 v17, v2 offset:{MS}")
    e("s_waitcnt lgkmcnt(0)")
    nop(1)
    for rr in (8, 4, 2, 1):
        e(f"v_max_f32_dpp v17, v17, v17 row_ror:{rr} row_mask:0xf bank_mask:0xf")
        nop(2)
    allreduce_g([17], [19], op="v_max_f32")
    e("v_sub_f32 v19, v16, v17")
    e(f"v_mul_f32 v19, {LOG2E:#x}, v19")
    e("v_exp_f32 v19, v19")
    nop(1)
    for a in ACC + [18]: e(f"v_mul_f32 v{a}, v{a}, v19")
    allreduce_g(ACC + [18], S[:9])
    e("v_and_b32 v2, 15, v0")
    e("v_lshlrev_b32 v2, 5, v2")
    e("v_add_u32 v2, s78, v2")
    e(f"ds_write_b128 v2, v[{ACC[0]}:{ACC[3]}] offset:{OP}")
    e(f"ds_write_b128 v2, v[{ACC[4]}:{ACC[7]}] offset:{OP+16}")
    e("v_mov_b32 v2, s69")
    e("v_lshlrev_b32 v2, 2, v2")
    e(f"ds_write_b32 v2, v18 offset:{LP}")
    e("s_waitcnt lgkmcnt(0)")
    e("s_barrier")
    L = f"Lo{int(ffn)}"
    e("s_cmp_ge_u32 s69, 2")
    e(f"s_cbranch_scc1 {L}_a")
    e("v_lshlrev_b32 v2, 2, v0")
    for w in range(16): e(f"ds_read_b32 v{88+w}, v2 offset:{OP+512*w}")
    e("s_waitcnt lgkmcnt(0)")
    for w in range(1, 16): e(f"v_add_f32 v88, v88, v{88+w}")
    e(f"ds_write_b32 v2, v88 offset:{OS}")
    e(f"s_branch {L}_b")
    lab(f"{L}_a")
    e("s_cmp_lg_u32 s69, 2")
    e(f"s_cbranch_scc1 {L}_c")
    e("v_lshlrev_b32 v2, 2, v0")
    e("v_mov_b32 v3, 0")
    e(f"ds_write_b32 v2, v3 offset:{OS}")
    e(f"s_branch {L}_b")
    lab(f"{L}_c")
    e("s_cmp_lg_u32 s69, 3")
    e(f"s_cbranch_scc1 {L}_b")
    e("v_mov_b32 v2, 0")
    for r in range(4): e(f"ds_read_b128 v[{88+4*r}:{91+4*r}], v2 offset:{LP+16*r}")
    e("s_waitcnt lgkmcnt(0)")
    for w in range(1, 16): e(f"v_add_f32 v88, v88, v{88+w}")
    e("v_mov_b32 v89, v88")
    e("v_mov_b32 v88, v17")
    e("v_mov_b32 v2, s92")
    e(f"buffer_store_dwordx2 v[88:89], v2, s[{SWS}:{SWS+3}], 0 offen")
    lab(f"{L}_b")
    e("s_waitcnt lgkmcnt(0)")
    e("s_barrier")
    stamp()
    e("v_lshlrev_b32 v2, 2, v22")
    for i in range(11): e(f"ds_read_b32 v{88+i}, v2 offset:{OS+48*i}")
    for a in ACC: e(f"v_mov_b32 v{a}, 0")
    e("s_waitcnt lgkmcnt(0)")
    for i in range(11):
        vm.wait(f'wo{i}')
        for j in range(4):
            w = WO[i] + j
            e(f"v_lshlrev_b32 v19, 16, v{w}")
            e(f"v_and_b32 v20, 0xffff0000, v{w}")
            e(f"v_fmac_f32 v{ACC[2*j]}, v{88+i}, v19")
            e(f"v_fmac_f32 v{ACC[2*j+1]}, v{88+i}, v20")
    e("v_mov_b32 v3, 2560")
    e("v_mul_u32_u24 v2, v22, v3")
    e("v_lshl_add_u32 v2, v23, 5, v2")
    e(f"ds_write_b128 v2, v[{ACC[0]}:{ACC[3]}] offset:{YP}")
    e(f"ds_write_b128 v2, v[{ACC[4]}:{ACC[7]}] offset:{YP+16}")
    e("s_waitcnt lgkmcnt(0)")
    e("s_barrier")
    stamp()
    dstamp()
    if DBGM:
        for k in range(4): e(f"v_mov_b32 v{120+k}, s{96+k}")
        e("s_lshl_b32 s94, s2, 4"); e(f"s_add_u32 s94, s94, {5<<20}"); e("v_mov_b32 v124, s94")
        e("s_cmp_lg_u32 s69, 0"); e(f"s_cbranch_scc1 Ldbgs{int(ffn)}")
        e(f"buffer_store_dwordx4 v[120:123], v124, s[{SWS}:{SWS+3}], 0 offen")
        lab(f"Ldbgs{int(ffn)}")
    if STAMP:
        e("s_lshl_b32 s94, s2, 4")
        e("s_add_u32 s94, s94, s69")
        e("s_lshl_b32 s94, s94, 8")
        e(f"s_add_u32 s94, s94, {3<<20}")
        e("v_and_b32 v2, 63, v0")
        e("v_lshlrev_b32 v2, 2, v2")
        e("v_add_u32 v2, s94, v2")
        e(f"buffer_store_dword v126, v2, s[{SWS}:{SWS+3}], 0 offen")
    e("s_cmp_ge_u32 s69, 10")
    e("s_cbranch_scc1 Lk1_end")
    e("v_lshlrev_b32 v2, 2, v0")
    for gq in range(12): e(f"ds_read_b32 v{88+gq}, v2 offset:{YP+2560*gq}")
    e("s_waitcnt lgkmcnt(0)")
    for gq in range(1, 12): e(f"v_add_f32 v88, v88, v{88+gq}")
    e("v_add_u32 v2, s93, v2")
    e(f"buffer_store_dword v88, v2, s[{SWS}:{SWS+3}], 0 offen")
    e("s_branch Lk1_end")

def k1():
    lab(f"{NAME}_k1_kernel")
    e("s_cmp_ge_u32 s2, 256")
    e("s_cbranch_scc1 Lk1_end")
    e("s_load_dwordx16 s[16:31], s[0:1], 0")
    e("s_load_dwordx2 s[32:33], s[0:1], 88")
    e("v_lshrrev_b32 v2, 6, v0")
    nop(1)
    e("v_readfirstlane_b32 s69, v2")
    e("s_and_b32 s3, s2, 31")
    e("s_lshr_b32 s4, s2, 5")
    e("s_and_b32 s5, s4, 1")
    e("s_lshr_b32 s6, s4, 1")
    e("s_mul_i32 s70, s69, 40")
    e("s_lshl_b32 s71, s2, 5")
    e("s_mul_i32 s72, s2, 20480")
    e("s_lshl_b32 s73, s69, 14")
    e("s_mov_b32 s74, 4096"); e("s_mov_b32 s75, 8192"); e("s_mov_b32 s76, 12288")
    e("s_lshl_b32 s77, s5, 12")
    e("s_lshl_b32 s78, s69, 9")
    e("s_lshl_b32 s79, s69, 7")
    for i in range(10): e(f"s_mov_b32 s{80+i}, {i*8192}")
    e("s_mul_i32 s90, s2, 5120")
    e(f"s_add_u32 s90, s90, {Y2_OFF}")
    e("s_lshl_b32 s92, s2, 3")
    e(f"s_add_u32 s92, s92, {ML_OFF}")
    e("s_mul_i32 s93, s2, 2560")
    e("s_waitcnt lgkmcnt(0)")
    srd(SX, 16, 17, 2560)
    e("s_lshl_b32 s7, s5, 5")
    e("s_add_u32 s7, s7, s3")
    e("s_lshl_b32 s7, s7, 20")
    e("s_lshl_b32 s8, s6, 18")
    e("s_add_u32 s7, s7, s8")
    e("s_add_u32 s10, s18, s7"); e("s_addc_u32 s11, s19, 0")
    srd(SK, 10, 11, 262144)
    e("s_add_u32 s10, s20, s7"); e("s_addc_u32 s11, s21, 0")
    srd(SV, 10, 11, 262144)
    e("s_lshl_b32 s7, s3, 8")
    e("s_add_u32 s10, s22, s7"); e("s_addc_u32 s11, s23, 0")
    e(f"s_sub_u32 s8, {640*8192}, s7")
    srd(SWQ, 10, 11, "s8")
    e("s_mul_i32 s7, s3, 163840")
    e("s_add_u32 s10, s24, s7"); e("s_addc_u32 s11, s25, 0")
    e(f"s_sub_u32 s8, {4096*1280}, s7")
    srd(SWO, 10, 11, "s8")
    srd(SW1, 28, 29, 640*3456)
    srd(SW2, 30, 31, 1728*1280)
    srd(SWS, 32, 33, 8 << 20)
    e("s_cmp_lt_u32 s2, 108")
    e("s_cbranch_scc1 Lk1_ffn")
    k1_body(False)
    lab("Lk1_ffn")
    k1_body(True)
    lab("Lk1_end")
    e("s_endpgm")

def k2():
    W, RA, RB = 0, 512, 1536
    lab(f"{NAME}_k2_kernel")
    e("s_cmp_ge_u32 s2, 40")
    e("s_cbranch_scc1 Lk2_end")
    e("s_load_dwordx2 s[16:17], s[0:1], 0")
    e("s_load_dwordx2 s[18:19], s[0:1], 64")
    e("s_load_dwordx2 s[20:21], s[0:1], 72")
    e("s_load_dwordx2 s[22:23], s[0:1], 88")
    e("s_cmp_ge_u32 s2, 20")
    e("s_cselect_b32 s3, 1, 0")
    e("s_mul_i32 s4, s3, 20")
    e("s_sub_u32 s4, s2, s4")
    e("s_waitcnt lgkmcnt(0)")
    srd(36, 16, 17, 2560)
    srd(40, 18, 19, 1280)
    srd(44, 20, 21, 2560)
    srd(48, 22, 23, 2 << 20)
    e(f"s_add_u32 s24, s22, {Y2_OFF}"); e("s_addc_u32 s25, s23, 0")
    srd(52, 24, 25, 108*5120)
    e("v_lshrrev_b32 v1, 5, v0")
    e("v_and_b32 v2, 31, v0")
    e("v_and_b32 v3, 127, v0")
    e("v_lshrrev_b32 v4, 2, v3")
    e("v_and_b32 v5, 3, v3")
    e("v_lshl_add_u32 v4, v5, 6, v4")
    e("s_lshl_b32 s5, s3, 5")
    e("v_add_u32 v4, s5, v4")
    e("v_lshlrev_b32 v4, 3, v4")
    e(f"v_add_u32 v4, {ML_OFF}, v4")
    e("buffer_load_dwordx2 v[6:7], v4, s[48:51], 0 offen")
    e("v_lshrrev_b32 v4, 2, v1")
    e("v_and_b32 v5, 3, v1")
    e("v_lshl_add_u32 v4, v5, 6, v4")
    e("v_add_u32 v4, s5, v4")
    e("v_mov_b32 v5, 2560")
    e("v_mul_u32_u24 v4, v4, v5")
    e("s_lshl_b32 s6, s4, 7")
    e("v_lshl_add_u32 v4, v2, 2, v4")
    e("v_add_u32 v4, s6, v4")
    for i in range(16):
        e(f"buffer_load_dword v{16+i}, v4, s[48:51], 0 offen")
        if i < 15: e("v_add_u32 v4, 5120, v4")
    e("v_lshlrev_b32 v4, 1, v1")
    e("v_add_u32 v4, s3, v4")
    e("v_mul_u32_u24 v4, v4, v5")
    e("v_lshl_add_u32 v4, v2, 2, v4")
    e("v_add_u32 v4, s6, v4")
    for i in range(14):
        e(f"buffer_load_dword v{32+i}, v4, s[52:55], 0 offen")
        if i < 13: e("v_add_u32 v4, 40960, v4")
    e("v_and_b32 v4, 63, v0")
    e("v_mul_u32_u24 v4, 20, v4")
    e("s_mul_i32 s7, s3, 1280")
    e("v_add_u32 v5, s7, v4")
    e("buffer_load_dwordx4 v[48:51], v5, s[36:39], 0 offen")
    e("buffer_load_dword v52, v5, s[36:39], 0 offen offset:16")
    e("buffer_load_dwordx4 v[56:59], v4, s[40:43], 0 offen")
    e("buffer_load_dword v60, v4, s[40:43], 0 offen offset:16")
    e("s_waitcnt vmcnt(34)")
    e("v_mov_b32 v8, v6")
    nop(2)
    e("v_max_f32_dpp v8, v8, v8 quad_perm:[1,0,3,2] row_mask:0xf bank_mask:0xf")
    nop(2)
    e("v_max_f32_dpp v8, v8, v8 quad_perm:[2,3,0,1] row_mask:0xf bank_mask:0xf")
    e("v_sub_f32 v9, v6, v8")
    e(f"v_mul_f32 v9, {LOG2E:#x}, v9")
    e("v_exp_f32 v9, v9")
    nop(1)
    e("v_mul_f32 v10, v9, v7")
    nop(2)
    e("v_add_f32_dpp v10, v10, v10 quad_perm:[1,0,3,2] row_mask:0xf bank_mask:0xf")
    nop(2)
    e("v_add_f32_dpp v10, v10, v10 quad_perm:[2,3,0,1] row_mask:0xf bank_mask:0xf")
    e("v_rcp_f32 v10, v10")
    nop(1)
    e("v_mul_f32 v9, v9, v10")
    e("v_lshlrev_b32 v4, 2, v3")
    e(f"ds_write_b32 v4, v9 offset:{W}")
    e("s_waitcnt lgkmcnt(0)")
    e("s_barrier")
    e("v_lshlrev_b32 v4, 2, v1")
    for i in range(16): e(f"ds_read_b32 v{64+i}, v4 offset:{W+32*i}")
    e("s_waitcnt lgkmcnt(0)")
    e("s_waitcnt vmcnt(18)")
    e("v_mul_f32 v8, v16, v64")
    for i in range(1, 16): e(f"v_fmac_f32 v8, v{16+i}, v{64+i}")
    e("s_waitcnt vmcnt(4)")
    e("v_add_f32 v9, v32, v33")
    for i in range(2, 14): e(f"v_add_f32 v9, v9, v{32+i}")
    e("v_lshlrev_b32 v4, 2, v0")
    e(f"ds_write_b32 v4, v8 offset:{RA}")
    e(f"ds_write_b32 v4, v9 offset:{RB}")
    e("s_waitcnt vmcnt(0)")
    e("v_mov_b32 v10, 0")
    for j in range(5):
        e(f"v_lshlrev_b32 v11, 16, v{48+j}")
        e(f"v_lshlrev_b32 v12, 16, v{56+j}")
        e("v_mul_f32 v11, v11, v12")
        e(f"v_and_b32 v12, 0xffff0000, v{48+j}")
        e(f"v_and_b32 v13, 0xffff0000, v{56+j}")
        e("v_mul_f32 v12, v12, v13")
        e("v_cvt_pk_bf16_f32 v11, v11, v12")
        e("v_lshlrev_b32 v12, 16, v11")
        e("v_and_b32 v11, 0xffff0000, v11")
        e("v_add_f32 v10, v10, v12")
        e("v_add_f32 v10, v10, v11")
    for rr in (8, 4, 2, 1):
        nop(2)
        e(f"v_add_f32_dpp v10, v10, v10 row_ror:{rr} row_mask:0xf bank_mask:0xf")
    allreduce_g([10], [11])
    e("v_cvt_pk_bf16_f32 v10, v10, v10")
    e("v_lshlrev_b32 v10, 16, v10")
    e("v_mul_f32 v10, 0xbfb8aa3b, v10")
    e("v_exp_f32 v10, v10")
    nop(1)
    e("v_add_f32 v10, 1.0, v10")
    e("v_rcp_f32 v10, v10")
    nop(1)
    e("v_cvt_pk_bf16_f32 v10, v10, v10")
    e("v_lshlrev_b32 v10, 16, v10")
    e("v_sub_f32 v11, 1.0, v10")
    e("v_cvt_pk_bf16_f32 v11, v11, v11")
    e("v_lshlrev_b32 v11, 16, v11")
    e("s_waitcnt lgkmcnt(0)")
    e("s_barrier")
    e("v_lshlrev_b32 v4, 2, v2")
    for r in range(8):
        e(f"ds_read_b32 v{16+r}, v4 offset:{RA+128*r}")
        e(f"ds_read_b32 v{32+r}, v4 offset:{RB+128*r}")
    e("s_waitcnt lgkmcnt(0)")
    for r in range(1, 8):
        e(f"v_add_f32 v16, v16, v{16+r}")
        e(f"v_add_f32 v32, v32, v{32+r}")
    e("v_cvt_pk_bf16_f32 v16, v16, v32")
    e("v_lshlrev_b32 v17, 16, v16")
    e("v_and_b32 v18, 0xffff0000, v16")
    e("v_mul_f32 v17, v10, v17")
    e("v_mul_f32 v18, v11, v18")
    e("v_cvt_pk_bf16_f32 v16, v17, v18")
    e("v_lshlrev_b32 v17, 16, v16")
    e("v_and_b32 v18, 0xffff0000, v16")
    e("v_add_f32 v17, v17, v18")
    e("v_cvt_pk_bf16_f32 v17, v17, v17")
    if DBGM:
        e("s_cmp_lg_u32 s2, 0"); e("s_cbranch_scc1 Lk2dbg")
        e("s_load_dwordx2 s[26:27], s[0:1], 80"); e("s_waitcnt lgkmcnt(0)")
        srd(56, 26, 27, 256); srd(60, 22, 23, 8 << 20)
        e("v_and_b32 v24, 3, v0"); e("v_mul_u32_u24 v25, 85, v24"); e("v_lshlrev_b32 v25, 4, v25"); e(f"v_add_u32 v25, {5<<20}, v25")
        e("buffer_load_dwordx4 v[28:31], v25, s[60:63], 0 offen"); e("s_waitcnt vmcnt(0)")
        e("s_memrealtime s[28:29]"); e("s_waitcnt lgkmcnt(0)"); e("v_mov_b32 v26, s28")
        e("v_cmp_eq_u32 vcc, 3, v24"); e("s_nop 1"); e("v_cndmask_b32 v29, v29, v26, vcc")
        e("v_lshlrev_b32 v24, 4, v24")
        e("buffer_store_dwordx4 v[28:31], v24, s[56:59], 0 offen")
        lab("Lk2dbg")
    e("v_cmp_gt_u32 vcc, 32, v0")
    e("s_and_saveexec_b64 s[8:9], vcc")
    e("s_cbranch_execz Lk2_end")
    e("v_lshlrev_b32 v4, 1, v2")
    e("s_lshl_b32 s6, s4, 6")
    e("v_add_u32 v4, s6, v4")
    e("v_add_u32 v4, s7, v4")
    e("buffer_store_short v17, v4, s[44:47], 0 offen")
    lab("Lk2_end")
    e("s_endpgm")

hdr = open(f"cdna_kernels/{NAME}.s.ref").read().split("; Override launch")[0]
o = [hdr.rstrip("\n")]
o.append(f"; @launch kernel={NAME}_k1_kernel grid=(256,1,1) block=(1024,1,1) lds={LDS1}")
o.append(f"; @launch kernel={NAME}_k2_kernel grid=(40,1,1) block=(256,1,1) lds=4096")
o.append('.amdgcn_target "amdgcn-amd-amdhsa--gfx950"')
o.append(".text")
for k in ("k1", "k2"):
    o.append(f".globl {NAME}_{k}_kernel")
    o.append(f".type {NAME}_{k}_kernel,@function")
o.append(".p2align 8")
k1()
out.append(".p2align 8")
k2()
o += out
o.append('.section .rodata,"a"')
for k, nv in (("k1", 128), ("k2", 96)):
    o.append(".p2align 6")
    o.append(f".amdhsa_kernel {NAME}_{k}_kernel")
    o.append(f"  .amdhsa_next_free_vgpr {nv}")
    o.append("  .amdhsa_next_free_sgpr 102")
    o.append(f"  .amdhsa_accum_offset {nv}")
    o.append("  .amdhsa_group_segment_fixed_size 0")
    o.append("  .amdhsa_kernarg_size 96")
    o.append("  .amdhsa_user_sgpr_count 2")
    o.append("  .amdhsa_user_sgpr_kernarg_segment_ptr 1")
    o.append("  .amdhsa_system_sgpr_workgroup_id_x 1")
    o.append(".end_amdhsa_kernel")
open(sys.argv[1], "w").write("\n".join(o) + "\n")
```
